```python
import torch

def _softmax(x, axis=-1):
    return torch.softmax(x, dim=axis)
def _gelu(x):
    return torch.nn.functional.gelu(x, approximate="tanh")
def _silu(x):
    return torch.nn.functional.silu(x)
def _sigmoid(x):
    return torch.sigmoid(x)
def _layernorm(x, axis=-1, eps=1e-5):
    m = x.mean(dim=axis, keepdim=True)
    v = x.var(dim=axis, keepdim=True, unbiased=False)
    return (x - m) / torch.sqrt(v + eps)
def _scatter_add(tgt, idx, src, axis=0):
    return tgt.clone().index_add_(axis, idx, src)
def _segment_sum(src, seg, n):
    out = torch.zeros((n,) + src.shape[1:], dtype=src.dtype)
    return out.index_add_(0, seg, src)
def _pad(x, pw):
    flat = tuple(v for pair in reversed(pw) for v in pair)
    return torch.nn.functional.pad(x, flat)

kernel_name = 'recurrent_scan__sliding_block_cached__dense_activation_gelu__decode'

def setup_inputs():

    _w = (lambda a: (lambda t: t.to(torch.bfloat16) if t.is_floating_point() else t)(torch.as_tensor(a)))
    def _A_setup():
        B, Sq, D = 1, 1, 512
        Hq, Hkv, Sk, Dh = 32, 8, 32768, 128
        assert Hq % Hkv == 0, (Hq, Hkv)
        return {
            "x": _w((lambda *s: torch.randn(*s, dtype=torch.bfloat16) * 0.4)(B, Sq, D)),
            "k_cache": _w((lambda *s: torch.randn(*s, dtype=torch.bfloat16) * 1.6)(B, Hkv, Sk, Dh)),
            "v_cache": _w((lambda *s: torch.randn(*s, dtype=torch.bfloat16) * 1.6)(B, Hkv, Sk, Dh)),
            "wq": _w((lambda *s: torch.randn(*s, dtype=torch.bfloat16) * 1.6)(D, Hq * Dh) * (D ** -0.5)),
            "wo": _w((lambda *s: torch.randn(*s, dtype=torch.bfloat16) * 1.6)(Hq * Dh, D) * ((Hq * Dh) ** -0.5)),
        }
    _A_in = _A_setup()

    def _B_setup():
        B, S, D, F = 1, 1, 512, 1792
        return {
            "x": _w((lambda *s: torch.randn(*s, dtype=torch.bfloat16) * 0.4)(B, S, D)),
            "w1": _w((lambda *s: torch.randn(*s, dtype=torch.bfloat16) * 1.6)(D, F) * (D ** -0.5)),
            "b1": _w((lambda *s: torch.randn(*s, dtype=torch.bfloat16) * 1.6)(F) * 0.01),
            "w2": _w((lambda *s: torch.randn(*s, dtype=torch.bfloat16) * 1.6)(F, D) * (F ** -0.5)),
            "b2": _w((lambda *s: torch.randn(*s, dtype=torch.bfloat16) * 1.6)(D) * 0.01),
        }
    _B_in = _B_setup()

    return {
        "A_x": _A_in["x"],
        "A_k_cache": _A_in["k_cache"],
        "A_v_cache": _A_in["v_cache"],
        "A_wq": _A_in["wq"],
        "A_wo": _A_in["wo"],
        "B_x": _B_in["x"],
        "B_w1": _B_in["w1"],
        "B_b1": _B_in["b1"],
        "B_w2": _B_in["w2"],
        "B_b2": _B_in["b2"],
    }

def reference(A_x, A_k_cache, A_v_cache, A_wq, A_wo, B_x, B_w1, B_b1, B_w2, B_b2):
    def _A_ref(x, k_cache, v_cache, wq, wo):
        B, Sq, D = x.shape
        Hq, Dh = 32, 128
        Hkv, Sk = k_cache.shape[1], k_cache.shape[2]
        W = min(4096, max(256, Sk // 4))
        rep = Hq // Hkv
        q = (lambda x, *d: x.permute(*d))((x @ wq).reshape(B, Sq, Hq, Dh), 0, 2, 1, 3)
        k = (lambda x, n, axis: torch.repeat_interleave(x, n, dim=axis))(k_cache[:, :, Sk - W:, :], rep, axis=1)
        v = (lambda x, n, axis: torch.repeat_interleave(x, n, dim=axis))(v_cache[:, :, Sk - W:, :], rep, axis=1)
        scores = torch.einsum("bhqd,bhkd->bhqk", q, k) * (Dh ** -0.5)
        p = _softmax(scores, axis=-1)
        o = torch.einsum("bhqk,bhkd->bhqd", p, v)
        return (lambda x, *d: x.permute(*d))(o, 0, 2, 1, 3).reshape(B, Sq, Hq * Dh) @ wo

    def _B_ref(x, w1, b1, w2, b2):
        h = torch.einsum("bsd,df->bsf", x, w1) + b1
        h = _gelu(h)
        return torch.einsum("bsf,fd->bsd", h, w2) + b2

    x = A_x
    xn = _layernorm(x, axis=-1)
    s = _A_ref(xn, A_k_cache, A_v_cache, A_wq, A_wo)
    g = _silu(_B_ref(xn, B_w1, B_b1, B_w2, B_b2))
    return x + s * g
```

```python
KNAME = "recurrent_scan__sliding_block_cached__dense_activation_gelu__decode_kernel"
class Asm:
    def __init__(self):
        self.lines = []
        self.nlabel = 0
    def __call__(self, s):
        for l in s.strip("\n").split("\n"):
            self.lines.append("    " + l.strip() if not l.strip().endswith(":") else l.strip())
    def label(self, base="L"):
        self.nlabel += 1
        return f"{base}_{self.nlabel}"
    def text(self):
        return "\n".join(self.lines) + "\n"

def wrap(body, grid, block, lds, vgpr, sgpr=96, accum=None, header=""):
    if accum is None:
        accum = (vgpr + 3) // 4 * 4
    return f"""{header}; @launch grid=({grid},1,1) block=({block},1,1) lds={lds}
.amdgcn_target "amdgcn-amd-amdhsa--gfx950"
.text
.globl {KNAME}
.p2align 8
.type {KNAME},@function
{KNAME}:
{body}
.section .rodata,"a"
.p2align 6
.amdhsa_kernel {KNAME}
  .amdhsa_next_free_vgpr {vgpr}
  .amdhsa_next_free_sgpr {sgpr}
  .amdhsa_accum_offset {accum}
  .amdhsa_group_segment_fixed_size 0
  .amdhsa_kernarg_size 104
  .amdhsa_user_sgpr_count 2
  .amdhsa_user_sgpr_kernarg_segment_ptr 1
  .amdhsa_system_sgpr_workgroup_id_x 1
.end_amdhsa_kernel
"""
```

```python
import re
TRANS = ("v_exp_f32", "v_log_f32", "v_rcp_f32", "v_rsq_f32", "v_sqrt_f32", "v_sin_f32", "v_cos_f32")
def regs(tok):
    tok = tok.strip()
    tok = re.sub(r"^-|^abs\(|\)$|^\|", "", tok).strip("|")
    m = re.fullmatch(r"([vsa])(\d+)", tok)
    if m: return {m.group(1) + m.group(2)}
    m = re.fullmatch(r"([vsa])\[(\d+):(\d+)\]", tok)
    if m: return {m.group(1) + str(i) for i in range(int(m.group(2)), int(m.group(3)) + 1)}
    if tok == "vcc": return {"vcc"}
    if tok in ("vcc_lo", "vcc_hi"): return {"vcc"}
    if tok == "exec": return {"exec"}
    return set()
class I:
    pass
def parse(line):
    s = line.split(";")[0].strip()
    if not s or s.endswith(":") or s.startswith("."):
        return None
    parts = s.split(None, 1)
    op = parts[0]
    rest = parts[1] if len(parts) > 1 else ""
    ops = [o.strip() for o in re.split(r",(?![^\[]*\])", rest)] if rest else []
    mods = ""
    if ops:
        lp = ops[-1].split(None, 1)
        ops[-1] = lp[0]
        mods = lp[1] if len(lp) > 1 else ""
    i = I(); i.op = op; i.ops = ops; i.mods = mods
    i.w = set(); i.r = set(); i.kind = "other"; i.dpp = False; i.srcc = set(); i.ab = set(); i.passes = 0
    i.storedata = set()
    base = re.sub(r"_(e32|e64|dpp|sdwa)$", "", op)
    i.base = base
    if op.startswith("v_mfma"):
        i.kind = "mfma"; i.w = regs(ops[0]); i.ab = regs(ops[1]) | regs(ops[2]); i.srcc = regs(ops[3]); i.r = i.ab | i.srcc
        i.passes = 8 if "32x32" in op else 4
    elif op.startswith("v_"):
        i.kind = "valu"
        i.dpp = op.endswith("_dpp") or "row_" in mods or "quad_perm" in mods or "row_" in rest or "quad_perm" in rest
        if base.startswith("v_permlane") and "swap" in base:
            i.w = regs(ops[0]) | regs(ops[1]); i.r = set(i.w)
        elif base.startswith("v_cmp"):
            i.w = regs(ops[0]);
            for o in ops[1:]: i.r |= regs(o)
        elif base in ("v_add_co_u32", "v_sub_co_u32", "v_addc_co_u32"):
            i.w = regs(ops[0]) | regs(ops[1])
            for o in ops[2:]: i.r |= regs(o)
        else:
            i.w = regs(ops[0])
            for o in ops[1:]: i.r |= regs(o)
            if base in ("v_fmac_f32", "v_dot2c_f32_bf16", "v_writelane_b32") or i.dpp: i.r |= regs(ops[0])
            if base == "v_cndmask_b32" and len(ops) == 3: i.r |= {"vcc"}
    elif op.startswith("ds_"):
        i.kind = "ds"
        if op.startswith("ds_read") or "_rtn" in op or op.startswith("ds_bpermute") or op.startswith("ds_swizzle") or op.startswith("ds_permute"):
            i.w = regs(ops[0])
            for o in ops[1:]: i.r |= regs(o)
        else:
            for o in ops: i.r |= regs(o)
    elif op.startswith("buffer_") or op.startswith("global_"):
        i.kind = "vmem"
        if "load" in op and " lds" not in (" " + mods):
            i.w = regs(ops[0])
            for o in ops[1:]: i.r |= regs(o)
        else:
            for o in ops: i.r |= regs(o)
            if op.endswith("x4") or op.endswith("x3"):
                i.storedata = regs(ops[0]) if op.startswith("buffer_") else regs(ops[1])
    elif op.startswith("s_"):
        i.kind = "salu"
    return i
def states(i):
    if i.op == "s_nop": return int(i.ops[0], 0) + 1
    return 1
def need(p, c):
    n = 0
    vw = {x for x in p.w if x[0] in "va" and x != "vcc"}
    sw = {x for x in p.w if x[0] == "s" or x == "vcc"}
    if p.kind == "valu":
        if c.kind == "mfma" and vw & c.r: n = max(n, 2)
        if c.kind == "valu":
            if c.dpp and vw & c.r: n = max(n, 2)
            if c.base.startswith("v_permlane") and vw & c.r: n = max(n, 2)
            if c.base in ("v_readlane_b32", "v_readfirstlane_b32") and vw & c.r: n = max(n, 1)
            if sw & c.r: n = max(n, 4 if c.base in ("v_readlane_b32", "v_writelane_b32") else 2)
            if p.base in TRANS and vw & c.r: n = max(n, 1)
        if c.kind == "vmem" and sw & c.r: n = max(n, 5)
        if p.base in TRANS and c.kind in ("vmem", "ds", "mfma") and vw & c.r: n = max(n, 1)
    if p.kind == "mfma":
        big = {4: 8, 8: 12}[p.passes]
        if c.kind == "mfma":
            if p.w & c.ab: n = max(n, big)
            if p.w & c.srcc and p.w != c.srcc: n = max(n, big - 2)
            if p.w & c.w and p.w != c.srcc: n = max(n, big)
        elif c.kind in ("valu", "vmem", "ds"):
            if p.w & (c.r | c.w): n = max(n, big)
        if c.kind == "valu" and p.srcc & c.w: n = max(n, {4: 3, 8: 7}[p.passes])
    if p.storedata and c.kind in ("valu", "mfma", "ds", "vmem") and p.storedata & c.w: n = max(n, 2)
    return n
def fix(lines):
    out = []
    for line in lines:
        c = parse(line)
        if c is None:
            out.append((line, None)); continue
        dist = 0; req = 0
        for (t, p) in reversed(out):
            if p is None: continue
            r = need(p, c) - dist
            if r > req: req = r
            dist += states(p)
            if dist > 16: break
        while req > 0:
            k = min(req, 16)
            l = f"    s_nop {k-1}"
            out.append((l, parse(l))); req -= k
        out.append((line, c))
    return [t for t, _ in out]
```

```python
import sys
from asmlib import *
import hazard

QP, HP, ML, OP, SP, YP = 0x10000, 0x20000, 0x30000, 0x40000, 0xC0000, 0x100000
STAMPS = 0x8000000
XN0, XN1, QL, HL = 0, 1024, 2048, 3072
QFLAG, CNT_M, CNT_L, CNT_O, CNT_V = 3136, 3140, 3144, 3148, 3152
MX, LT, OPART = 3168, 3328, 4096
LDS_BYTES = 10240
LOG2E = 0x3FB8AA3B
SPIN_MAX = 200000

HEADER = open("recurrent_scan__sliding_block_cached__dense_activation_gelu__decode.s.ref").read().split("; Override launch geometry")[0]

def gen(out, nt="nt", stamps=False, opts=None):
    opts = opts or {}
    a = Asm()
    NT = nt
    nst = [0]
    def stamp(k):
        if stamps:
            a(f"s_memrealtime s[{64+2*k}:{65+2*k}]")
    def srd(d, p, size):
        a(f"s_mov_b32 s{d}, s{p}")
        a(f"s_mov_b32 s{d+1}, s{p+1}")
        a(f"s_mov_b32 s{d+2}, {size:#x}")
        a(f"s_mov_b32 s{d+3}, 0x20000")
    def wave_sum(v):
        for m in ["row_ror:1", "row_ror:2", "row_ror:4", "row_ror:8"]:
            a(f"v_add_f32_dpp v{v}, v{v}, v{v} {m} row_mask:0xf bank_mask:0xf")
        a(f"v_add_f32_dpp v{v}, v{v}, v{v} row_bcast:15 row_mask:0xa bank_mask:0xf")
        a(f"v_add_f32_dpp v{v}, v{v}, v{v} row_bcast:31 row_mask:0xc bank_mask:0xf")
    def rne(dst, src):
        a(f"v_cvt_pk_bf16_f32 v{dst}, v{src}, v{src}")
        a(f"v_lshlrev_b32 v{dst}, 16, v{dst}")
    def epoch_and_barrier():
        a("s_load_dword s6, s[40:41], 0")
        a("s_waitcnt lgkmcnt(0)")
        a("s_add_u32 s8, s6, 1")
        a("s_and_b32 s7, s8, 0xfff")
        a("s_barrier")
    def lds_spin(addr, val, vt, sleep=1):
        L = a.label("SPIN"); Lx = a.label("SPINX")
        a(f"v_mov_b32 v{vt}, {addr}")
        a("s_mov_b32 s9, 0")
        a(f"{L}:")
        a(f"ds_read_b32 v{vt+1}, v{vt}")
        a("s_add_u32 s9, s9, 1")
        a(f"s_cmp_gt_u32 s9, {SPIN_MAX}")
        a(f"s_cbranch_scc1 {Lx}")
        a("s_waitcnt lgkmcnt(0)")
        a(f"v_readfirstlane_b32 s10, v{vt+1}")
        a(f"s_cmp_ge_u32 s10, {val}")
        a(f"s_cbranch_scc1 {Lx}")
        if sleep: a(f"s_sleep {sleep}")
        a(f"s_branch {L}")
        a(f"{Lx}:")
        a("s_waitcnt lgkmcnt(0)")
    def poll(loads, first, nreg, vt, sleep=0):
        L = a.label("POLL"); Lx = a.label("POLLX")
        a("s_mov_b32 s9, 0")
        a(f"{L}:")
        for l in loads: a(l)
        a("s_add_u32 s9, s9, 1")
        a("s_waitcnt vmcnt(0)")
        for r in range(first, first + nreg):
            a(f"v_xor_b32 v{r}, s7, v{r}")
        a(f"v_or3_b32 v{vt}, v{first}, v{first+1}, v{first+2}")
        r = first + 3
        while r < first + nreg:
            if r + 1 < first + nreg:
                a(f"v_or3_b32 v{vt}, v{vt}, v{r}, v{r+1}"); r += 2
            else:
                a(f"v_or_b32 v{vt}, v{vt}, v{r}"); r += 1
        a(f"v_and_b32 v{vt}, 0xfff, v{vt}")
        a(f"v_cmp_ne_u32 vcc, 0, v{vt}")
        a(f"s_cbranch_vccz {Lx}")
        a(f"s_cmp_gt_u32 s9, {SPIN_MAX}")
        a(f"s_cbranch_scc1 {Lx}")
        if sleep: a(f"s_sleep {sleep}")
        a(f"s_branch {L}")
        a(f"{Lx}:")
    def tag(dst, src, vmask):
        a(f"v_and_or_b32 v{dst}, v{src}, v{vmask}, s7")
    def layernorm(xraw, f, t, ldsbase):
        for k in range(4):
            a(f"v_lshlrev_b32 v{f+2*k}, 16, v{xraw+k}")
            a(f"v_and_b32 v{f+2*k+1}, 0xffff0000, v{xraw+k}")
        a(f"v_add_f32 v{t}, v{f}, v{f+1}")
        for k in range(2, 8): a(f"v_add_f32 v{t}, v{t}, v{f+k}")
        wave_sum(t)
        a(f"v_readlane_b32 s11, v{t}, 63")
        a(f"v_mov_b32 v{t}, 0x3b000000")
        a(f"v_mul_f32 v{t}, s11, v{t}")
        a(f"v_sub_f32 v{t+2}, v{f}, v{t}")
        a(f"v_mul_f32 v{t+1}, v{t+2}, v{t+2}")
        for k in range(1, 8):
            a(f"v_sub_f32 v{t+2}, v{f+k}, v{t}")
            a(f"v_fmac_f32 v{t+1}, v{t+2}, v{t+2}")
        wave_sum(t + 1)
        a(f"v_readlane_b32 s11, v{t+1}, 63")
        a(f"v_mov_b32 v{t+1}, 0x3b000000")
        a(f"v_mul_f32 v{t+1}, s11, v{t+1}")
        rne(t, t)
        rne(t + 1, t + 1)
        a(f"v_add_f32 v{t+1}, 0x3727c5ac, v{t+1}")
        rne(t + 1, t + 1)
        a(f"v_sqrt_f32 v{t+1}, v{t+1}")
        rne(t + 1, t + 1)
        a(f"v_rcp_f32 v{t+1}, v{t+1}")
        for k in range(8): a(f"v_sub_f32 v{f+k}, v{f+k}, v{t}")
        for k in range(4):
            a(f"v_cvt_pk_bf16_f32 v{xraw+k}, v{f+2*k}, v{f+2*k+1}")
        for k in range(4):
            a(f"v_lshlrev_b32 v{f+2*k}, 16, v{xraw+k}")
            a(f"v_and_b32 v{f+2*k+1}, 0xffff0000, v{xraw+k}")
        for k in range(8): a(f"v_mul_f32 v{f+k}, v{f+k}, v{t+1}")
        for k in range(4):
            a(f"v_cvt_pk_bf16_f32 v{xraw+k}, v{f+2*k}, v{f+2*k+1}")
        a(f"v_lshlrev_b32 v{t+3}, 4, v0")
        a(f"ds_write_b128 v{t+3}, v[{xraw}:{xraw+3}] offset:{ldsbase}")
    def selectors(sel, t):
        a(f"v_and_b32 v{t}, 1, v0")
        a(f"v_cmp_eq_u32 vcc, 1, v{t}")
        a(f"v_mov_b32 v{t}, 0x0c0c0100")
        a(f"v_mov_b32 v{t+1}, 0x01000c0c")
        a(f"v_cndmask_b32 v{t+1}, v{t}, v{t+1}, vcc")
        a(f"v_mov_b32 v{t}, 0x0c0c0302")
        a(f"v_mov_b32 v{t+2}, 0x03020c0c")
        a(f"v_cndmask_b32 v{t+2}, v{t}, v{t+2}, vcc")
        a(f"v_bfe_u32 v{t}, v0, 1, 2")
        a(f"v_mov_b32 v{t+3}, 0x0c0c0c0c")
        for r in range(4):
            a(f"v_cmp_eq_u32 vcc, {r}, v{t}")
            a(f"v_cndmask_b32 v{sel+2*r}, v{t+3}, v{t+1}, vcc")
            a(f"v_cndmask_b32 v{sel+2*r+1}, v{t+3}, v{t+2}, vcc")
    def stage1_mfma(n, xp, sel, abuf, D, W, vm_after):
        for t in range(n):
            A = abuf + 4 * (t & 1)
            for r in range(4):
                a(f"v_perm_b32 v{A+r}, v{xp+t//2}, v{xp+t//2}, v{sel+2*r+(t&1)}")
            a(f"s_waitcnt vmcnt({n-1-t+vm_after})")
            c = "0" if t == 0 else f"v[{D}:{D+3}]"
            a(f"v_mfma_f32_16x16x32_bf16 v[{D}:{D+3}], v[{A}:{A+3}], v[{W+4*t}:{W+4*t+3}], {c}")
    def fold_halves(D, t):
        for r in range(4): a(f"v_mov_b32 v{t+r}, v{D+r}")
        for r in range(4): a(f"v_permlane32_swap_b32 v{D+r}, v{t+r}")
        for r in range(4): a(f"v_add_f32_dpp v{D+r}, v{t+r}, v{D+r} row_ror:8 row_mask:0xf bank_mask:0xf")
    def vperm_block(raw, outb, selL, selH, waits=None):
        for tp in range(4):
            if waits is not None: a(f"s_waitcnt vmcnt({waits[tp]})")
            for w in range(4):
                a(f"v_perm_b32 v{outb+(2*w)*4+tp}, v{raw+(2*tp+1)*4+w}, v{raw+(2*tp)*4+w}, s{selL}")
                a(f"v_perm_b32 v{outb+(2*w+1)*4+tp}, v{raw+(2*tp+1)*4+w}, v{raw+(2*tp)*4+w}, s{selH}")
    def tr_reduce4(v0_):
        a(f"v_permlane32_swap_b32 v{v0_}, v{v0_+2}")
        a(f"v_permlane32_swap_b32 v{v0_+1}, v{v0_+3}")
        a(f"v_add_f32 v{v0_}, v{v0_}, v{v0_+2}")
        a(f"v_add_f32 v{v0_+1}, v{v0_+1}, v{v0_+3}")
        a(f"v_permlane16_swap_b32 v{v0_}, v{v0_+1}")
        a(f"v_add_f32 v{v0_}, v{v0_}, v{v0_+1}")
    def finish():
        if stamps:
            a("s_waitcnt lgkmcnt(0)")
            a("s_lshl_b32 s12, s2, 3")
            a("s_add_u32 s12, s12, s3")
            a("s_lshl_b32 s12, s12, 6")
            a(f"s_add_u32 s12, s12, {STAMPS:#x}")
            a("s_mov_b64 exec, 1")
            a("v_mov_b32 v1, 0")
            for k in range(12):
                a(f"v_mov_b32 v{2+k}, s{64+2*k}")
            for k in range(3):
                a(f"buffer_store_dwordx4 v[{2+4*k}:{5+4*k}], v1, s[40:43], s12 offen offset:{16*k}")
        a("s_endpgm")

    a("L_start:")
    if stamps:
        for k in range(1, 12): a(f"s_mov_b32 s{64+2*k}, 0")
    stamp(0)
    a(f"""
    s_cmp_ge_u32 s2, 256
    s_cbranch_scc1 L_end
    s_load_dwordx16 s[16:31], s[0:1], 0
    s_load_dwordx8 s[32:39], s[0:1], 64
    s_load_dwordx2 s[40:41], s[0:1], 96
    v_lshrrev_b32 v1, 6, v0
    v_and_b32 v0, 63, v0
    v_readfirstlane_b32 s3, v1
    s_and_b32 s4, s2, 7
    s_lshr_b32 s5, s2, 3
    s_mov_b32 s42, 0x10000000
    s_mov_b32 s43, 0x20000
    s_mov_b32 s60, 0x05040100
    s_mov_b32 s61, 0x07060302
    s_cmp_ge_u32 s3, 4
    s_cbranch_scc1 R_KV
    s_cmp_eq_u32 s3, 1
    s_cbranch_scc1 R_B
    s_cmp_ge_u32 s3, 2
    s_cbranch_scc1 R_WO
    """)
    a(f"""
R_Q:
    v_lshlrev_b32 v2, 4, v0
    v_lshrrev_b32 v3, 3, v0
    v_and_b32 v4, 7, v0
    v_lshlrev_b32 v5, 17, v3
    v_lshl_add_u32 v5, v4, 4, v5
    s_lshr_b32 s12, s5, 3            ; kq
    s_and_b32 s13, s5, 7             ; cb
    s_lshl_b32 s14, s12, 20
    s_lshl_b32 s15, s4, 10
    s_add_u32 s14, s14, s15
    s_lshl_b32 s15, s13, 7
    s_add_u32 s14, s14, s15
    s_waitcnt lgkmcnt(0)
    """)
    srd(44, 16, 1024); srd(48, 22, 4194304)
    a("buffer_load_dwordx4 v[16:19], v2, s[44:47], 0 offen")
    for t in range(16):
        a(f"buffer_load_dwordx4 v[{64+4*t}:{67+4*t}], v5, s[48:51], s14 offen {NT}")
        if t < 15: a("s_add_u32 s14, s14, 8192")
    epoch_and_barrier()
    stamp(1)
    selectors(36, 56)
    a("v_mov_b32 v15, 0xfffff000")
    a("s_waitcnt vmcnt(16)")
    stamp(2)
    layernorm(16, 20, 56, XN0)
    a("s_lshl_b32 s15, s12, 8")
    a("v_lshl_add_u32 v6, v3, 5, s15")
    a(f"ds_read_b128 v[28:31], v6 offset:{XN0}")
    a(f"ds_read_b128 v[32:35], v6 offset:{XN0+16}")
    a("s_waitcnt lgkmcnt(0)")
    stage1_mfma(16, 28, 36, 44, 52, 64, 0)
    a(f"""
    v_lshrrev_b32 v6, 4, v0
    v_lshlrev_b32 v6, 4, v6
    v_lshl_add_u32 v6, v4, 5, v6
    s_lshl_b32 s14, s4, 2
    s_add_u32 s14, s14, s12
    s_lshl_b32 s14, s14, 11
    s_lshl_b32 s15, s13, 8
    s_add_u32 s14, s14, s15
    s_add_u32 s14, s14, {QP:#x}
    """)
    fold_halves(52, 56)
    for r in range(4): tag(52 + r, 52 + r, 15)
    a("s_mov_b64 exec, 0x00ff00ff")
    a("buffer_store_dwordx4 v[52:55], v6, s[40:43], s14 offen sc1")
    a("s_mov_b64 exec, -1")
    stamp(3)
    a(f"""
    s_lshl_b32 s14, s4, 13
    s_add_u32 s14, s14, {QP:#x}
    s_add_u32 s15, s14, 4096
    """)
    loads = []
    for n in range(8):
        so = "s14" if n < 4 else "s15"
        loads.append(f"buffer_load_dwordx4 v[{64+4*n}:{67+4*n}], v2, s[40:43], {so} offen offset:{(n&3)*1024} sc1")
    poll(loads, 64, 32, 6)
    stamp(4)
    for h in range(2):
        for r in range(4):
            b = 64 + 4 * h + r
            a(f"v_add_f32 v{b}, v{b}, v{b+8}")
            a(f"v_add_f32 v{b+16}, v{b+16}, v{b+24}")
            a(f"v_add_f32 v{b}, v{b}, v{b+16}")
    a(f"""
    v_cvt_pk_bf16_f32 v20, v64, v65
    v_cvt_pk_bf16_f32 v21, v66, v67
    v_cvt_pk_bf16_f32 v22, v68, v69
    v_cvt_pk_bf16_f32 v23, v70, v71
    v_lshlrev_b32 v6, 3, v0
    ds_write_b64 v6, v[20:21] offset:{QL}
    ds_write_b64 v6, v[22:23] offset:{QL+512}
    v_mov_b32 v7, {QFLAG}
    v_mov_b32 v8, 1
    ds_write_b32 v7, v8
    s_cmp_ge_u32 s2, 128
    s_cbranch_scc1 L_fin
    """)
    a(f"""
    s_lshr_b32 s12, s2, 6
    s_lshl_b32 s12, s12, 3
    s_add_u32 s12, s12, s4
    s_lshl_b32 s12, s12, 7
    s_and_b32 s13, s5, 7
    s_lshl_b32 s13, s13, 4
    s_add_u32 s12, s12, s13          ; pos
    s_lshr_b32 s13, s12, 9           ; cc
    s_lshl_b32 s13, s13, 7
    s_bfe_u32 s14, s12, 0x40004      ; j'
    s_lshl_b32 s14, s14, 3
    s_add_u32 s13, s13, s14
    s_bfe_u32 s14, s12, 0x10008      ; G
    s_lshl_b32 s14, s14, 2
    s_add_u32 s13, s13, s14          ; col0
    s_lshl_b32 s13, s13, 1
    v_lshrrev_b32 v9, 4, v0
    v_lshlrev_b32 v9, 1, v9
    v_lshlrev_b32 v10, 11, v0        ; lane*2048
    """)
    srd(48, 34, 1024); srd(52, 36, 1024)
    a(f"""
    buffer_load_ushort v11, v9, s[44:47], s13 offen
    buffer_load_ushort v12, v9, s[48:51], s13 offen
    s_add_u32 s14, s12, {YP:#x}
    """)
    poll([f"buffer_load_dwordx4 v[64:67], v10, s[40:43], s14 offen sc1"], 64, 4, 6, sleep=1)
    stamp(5)
    tr_reduce4(64)
    for sh in (8, 4, 2, 1):
        a(f"v_add_f32_dpp v64, v64, v64 row_ror:{sh} row_mask:0xf bank_mask:0xf")
    a("v_lshlrev_b32 v11, 16, v11")
    a("v_lshlrev_b32 v12, 16, v12")
    rne(64, 64)
    a("v_add_f32 v64, v64, v12")
    rne(64, 64)
    a(f"v_mul_f32 v13, {LOG2E ^ 0x80000000:#x}, v64")
    a("v_exp_f32 v13, v13")
    a("v_add_f32 v13, 1.0, v13")
    a("v_rcp_f32 v13, v13")
    a("v_mul_f32 v13, v64, v13")
    rne(13, 13)
    a(f"""
    s_add_u32 s14, s12, {SP:#x}
    s_add_u32 s15, s14, 0x20000
    """)
    poll([f"buffer_load_dwordx4 v[64:67], v10, s[40:43], s14 offen sc1",
          f"buffer_load_dwordx4 v[68:71], v10, s[40:43], s15 offen sc1"], 64, 8, 6)
    stamp(6)
    for r in range(4): a(f"v_add_f32 v{64+r}, v{64+r}, v{68+r}")
    tr_reduce4(64)
    for sh in (8, 4, 2, 1):
        a(f"v_add_f32_dpp v64, v64, v64 row_ror:{sh} row_mask:0xf bank_mask:0xf")
    rne(64, 64)
    a("v_mul_f32 v64, v64, v13")
    rne(64, 64)
    a("v_add_f32 v64, v64, v11")
    a("v_cvt_pk_bf16_f32 v64, v64, v64")
    a("s_mov_b32 exec_lo, 0x00010001")
    a("s_mov_b32 exec_hi, 0x00010001")
    a("buffer_store_short v64, v9, s[52:55], s13 offen")
    a(f"""
    s_cmp_lg_u32 s2, 0
    s_cbranch_scc1 L_fin
    s_mov_b64 exec, 1
    v_mov_b32 v6, 0
    v_mov_b32 v7, s8
    buffer_store_dword v7, v6, s[40:43], 0 offen
    """)
    a("L_fin:")
    stamp(7)
    finish()

    a(f"""
R_B:
    v_lshlrev_b32 v2, 4, v0
    v_lshrrev_b32 v3, 3, v0
    v_and_b32 v4, 7, v0
    v_mul_u32_u24 v5, {8*3584}, v3
    v_lshl_add_u32 v5, v4, 4, v5
    s_lshr_b32 s12, s5, 2
    s_and_b32 s13, s5, 3
    s_and_b32 s14, s4, 1
    s_xor_b32 s15, s14, 1
    s_mul_i32 s15, s15, 3
    s_xor_b32 s14, s14, 1
    s_cmp_eq_u32 s13, s15
    s_cselect_b32 s14, s14, 2
    v_lshrrev_b32 v6, 2, v4
    v_cmp_eq_u32 vcc, s14, v6
    v_mov_b32 v7, 0x7fffff00
    v_cndmask_b32 v5, v5, v7, vcc
    s_mul_i32 s14, s4, 7
    s_lshr_b32 s14, s14, 1
    s_add_u32 s14, s14, s13
    s_lshl_b32 s14, s14, 7           ; Bk*128
    s_mul_i32 s15, s12, {64*3584}
    s_add_u32 s14, s14, s15          ; w1 soffset
    ; w2: voff = q*8192 + j'*16
    v_lshrrev_b32 v8, 4, v0
    v_and_b32 v9, 15, v0
    v_lshlrev_b32 v10, 13, v8
    v_lshl_add_u32 v10, v9, 4, v10
    v_cmp_eq_u32 vcc, 3, v8
    v_cndmask_b32 v11, v10, v7, vcc
    s_lshl_b32 s56, s4, 3
    s_add_u32 s56, s56, s12          ; kc
    s_mul_i32 s57, s56, {28*1024}
    s_lshl_b32 s15, s13, 8
    s_add_u32 s57, s57, s15          ; w2 soffset
    s_add_u32 s58, s57, 4096
    s_waitcnt lgkmcnt(0)
    """)
    srd(44, 16, 1024); srd(48, 28, 1835008); srd(52, 32, 1835008)
    a("buffer_load_dwordx4 v[16:19], v2, s[44:47], 0 offen")
    for t in range(8):
        a(f"buffer_load_dwordx4 v[{64+4*t}:{67+4*t}], v5, s[48:51], s14 offen {NT}")
        if t < 7: a("s_add_u32 s14, s14, 3584")
    for t in range(8):
        vo, so = ("v10", "s57") if t < 4 else ("v11", "s58")
        a(f"buffer_load_dwordx4 v[{96+4*t}:{99+4*t}], {vo}, s[52:55], {so} offen offset:{(t&3)*1024} {NT}")
    srd(44, 30, 3584)
    a(f"""
    v_min_u32 v12, 6, v4
    v_lshl_add_u32 v13, v12, 2, v8
    v_lshlrev_b32 v13, 1, v13
    s_mul_i32 s15, s56, 56
    buffer_load_ushort v14, v13, s[44:47], s15 offen
    """)
    epoch_and_barrier()
    stamp(1)
    selectors(36, 56)
    a("v_mov_b32 v15, 0xfffff000")
    a("s_waitcnt vmcnt(17)")
    layernorm(16, 20, 56, XN1)
    a("s_lshl_b32 s15, s12, 7")
    a("v_lshl_add_u32 v6, v3, 4, s15")
    a(f"ds_read_b128 v[28:31], v6 offset:{XN1}")
    a("s_waitcnt lgkmcnt(0)")
    stage1_mfma(8, 28, 36, 44, 52, 64, 9)
    a(f"""
    v_lshrrev_b32 v6, 4, v0
    v_lshlrev_b32 v6, 4, v6
    v_lshl_add_u32 v6, v4, 5, v6
    s_lshl_b32 s14, s56, 10          ; (g*8+kp)*1024
    s_lshl_b32 s15, s13, 8
    s_add_u32 s14, s14, s15
    s_add_u32 s14, s14, {HP:#x}
    """)
    fold_halves(52, 56)
    for r in range(4): tag(52 + r, 52 + r, 15)
    a("s_mov_b64 exec, 0x00ff00ff")
    a("buffer_store_dwordx4 v[52:55], v6, s[40:43], s14 offen sc1")
    a("s_mov_b64 exec, -1")
    stamp(3)
    a("s_waitcnt vmcnt(1)")
    vperm_block(96, 64, 60, 61)
    a(f"""
    v_lshlrev_b32 v6, 10, v3
    v_lshl_add_u32 v6, v12, 4, v6
    s_lshl_b32 s14, s4, 13
    s_and_b32 s15, s4, 1
    s_lshl_b32 s15, s15, 7
    s_add_u32 s14, s14, s15
    s_mul_i32 s15, s12, 112
    s_add_u32 s14, s14, s15
    s_add_u32 s14, s14, {HP:#x}
    """)
    poll([f"buffer_load_dwordx4 v[20:23], v6, s[40:43], s14 offen sc1"], 20, 4, 7, sleep=1)
    stamp(4)
    tr_reduce4(20)
    a("v_add_f32_dpp v20, v20, v20 row_ror:8 row_mask:0xf bank_mask:0xf")
    a("v_lshlrev_b32 v14, 16, v14")
    rne(20, 20)
    a("v_add_f32 v20, v20, v14")
    rne(20, 20)
    import struct as st_
    f2u = lambda f: st_.unpack("<I", st_.pack("<f", f))[0]
    c0 = -2.0 * 0.7978845608028654 * 1.4426950408889634
    a(f"""
    v_mul_f32 v21, v20, v20
    v_mov_b32 v22, {f2u(c0):#x}
    v_mov_b32 v23, {f2u(c0*0.044715):#x}
    v_fma_f32 v21, v21, v23, v22
    v_mul_f32 v21, v21, v20
    v_exp_f32 v21, v21
    v_add_f32 v21, 1.0, v21
    v_rcp_f32 v21, v21
    v_mul_f32 v20, v20, v21
    v_cvt_pk_bf16_f32 v20, v20, v20
    ds_write_b16 v13, v20 offset:{HL}
    v_lshlrev_b32 v6, 4, v8
    ds_read_b128 v[24:27], v6 offset:{HL}
    s_waitcnt lgkmcnt(0)
    """)
    for d in range(8):
        a(f"v_mfma_f32_16x16x32_bf16 v[{96+4*d}:{99+4*d}], v[24:27], v[{64+4*d}:{67+4*d}], 0")
    a(f"""
    v_lshlrev_b32 v6, 4, v0
    s_lshl_b32 s14, s56, 11
    s_lshl_b32 s15, s13, 9
    s_add_u32 s14, s14, s15
    s_add_u32 s14, s14, {YP:#x}
    """)
    for d in range(8): tag(28 + d, 96 + 4 * d, 15)
    a("s_mov_b64 exec, 0xffff")
    a("buffer_store_dwordx4 v[28:31], v6, s[40:43], s14 offen sc1")
    a("buffer_store_dwordx4 v[32:35], v6, s[40:43], s14 offen offset:256 sc1")
    a("s_mov_b64 exec, -1")
    stamp(7)
    finish()

    a(f"""
R_WO:
    s_cmp_eq_u32 s3, 2
    s_cbranch_scc0 R_WO_b
    v_lshlrev_b32 v2, 2, v0
    v_mov_b32 v3, 0
    v_mov_b32 v4, 0xff800000
    v_lshrrev_b32 v5, 2, v0
    v_cmp_eq_u32 vcc, 6, v5
    v_cndmask_b32 v3, v3, v4, vcc
    s_mov_b64 exec, 0xffffffff
    ds_write_b32 v2, v3 offset:{HL}
    s_mov_b64 exec, -1
    s_branch R_WO_c
R_WO_b:
    s_cmp_ge_u32 s5, {opts.get('pf_wgs', 2)}
    s_cbranch_scc1 R_WO_c
    s_getpc_b64 s[12:13]
L_pc:
    s_sub_u32 s12, s12, L_pc-L_start
    s_subb_u32 s13, s13, 0
    v_lshlrev_b32 v2, 7, v0
    v_add_u32 v3, 8192, v2
    v_mov_b32 v4, L_codeend-L_start-4
    v_min_u32 v2, v2, v4
    v_min_u32 v3, v3, v4
    global_load_dword v5, v2, s[12:13]
    global_load_dword v6, v3, s[12:13]
R_WO_c:
    s_sub_u32 s56, s3, 2             ; ks
    s_lshr_b32 s12, s5, 2
    s_and_b32 s13, s5, 3             ; cc
    s_lshl_b32 s57, s4, 3
    s_add_u32 s57, s57, s12          ; kc
    s_lshl_b32 s58, s57, 1
    s_add_u32 s58, s58, s56          ; kc*2+ks
    s_lshl_b32 s14, s58, 15
    s_lshl_b32 s15, s13, 8
    s_add_u32 s14, s14, s15
    s_add_u32 s15, s14, 4096
    v_lshrrev_b32 v8, 4, v0
    v_and_b32 v9, 15, v0
    v_lshlrev_b32 v10, 13, v8
    v_lshl_add_u32 v10, v9, 4, v10
    v_bfe_u32 v11, v0, 1, 3          ; sub
    v_and_b32 v12, 1, v0
    v_lshlrev_b32 v13, 11, v11
    v_lshl_add_u32 v13, v12, 6, v13
    v_lshl_add_u32 v13, v8, 4, v13
    v_lshlrev_b32 v14, 4, v11
    v_mov_b32 v15, 0xfffff000
    s_waitcnt lgkmcnt(0)
    """)
    srd(48, 24, 4194304)
    epoch_and_barrier()
    stamp(1)
    lds_spin(CNT_V, 4, 2, sleep=2)
    stamp(2)
    for t in range(8):
        so = "s14" if t < 4 else "s15"
        a(f"buffer_load_dwordx4 v[{96+4*t}:{99+4*t}], v10, s[48:51], {so} offen offset:{(t&3)*1024} {NT}")
    vperm_block(96, 64, 60, 61, waits=[6, 4, 2, 0])
    stamp(3)
    a(f"""
    s_lshr_b32 s14, s5, 3            ; hl
    s_lshl_b32 s15, s4, 2
    s_add_u32 s14, s14, s15
    s_lshl_b32 s14, s14, 9
    s_add_u32 s14, s14, {ML:#x}
    """)
    poll([f"buffer_load_dwordx4 v[{16+4*n}:{19+4*n}], v14, s[40:43], s14 offen offset:{n*128} sc1" for n in range(4)], 16, 16, 2)
    stamp(4)
    a(f"""
    v_max3_f32 v32, v16, v20, v24
    v_max_f32 v32, v32, v28
    v_max_f32_dpp v32, v32, v32 quad_perm:[2,3,0,1] row_mask:0xf bank_mask:0xf
    v_max_f32_dpp v32, v32, v32 row_ror:4 row_mask:0xf bank_mask:0xf
    v_max_f32_dpp v32, v32, v32 row_ror:8 row_mask:0xf bank_mask:0xf
    """)
    for n in range(4):
        a(f"v_sub_f32 v{36+n}, v{16+4*n}, v32")
        a(f"v_mul_f32 v{36+n}, {LOG2E:#x}, v{36+n}")
        a(f"v_exp_f32 v{36+n}, v{36+n}")
    a("v_mul_f32 v33, v36, v17")
    for n in range(1, 4): a(f"v_fmac_f32 v33, v{36+n}, v{17+4*n}")
    a(f"""
    v_add_f32_dpp v33, v33, v33 quad_perm:[2,3,0,1] row_mask:0xf bank_mask:0xf
    v_add_f32_dpp v33, v33, v33 row_ror:4 row_mask:0xf bank_mask:0xf
    v_add_f32_dpp v33, v33, v33 row_ror:8 row_mask:0xf bank_mask:0xf
    v_rcp_f32 v33, v33
    """)
    for n in range(4): a(f"v_mul_f32 v{36+n}, v{36+n}, v33")
    a(f"""
    s_lshl_b32 s14, s12, 1
    s_add_u32 s14, s14, s56
    s_lshl_b32 s14, s14, 7
    s_lshl_b32 s15, s4, 16
    s_add_u32 s14, s14, s15
    s_add_u32 s14, s14, {OP:#x}
    s_add_u32 s15, s14, 0x4000
    s_add_u32 s52, s14, 0x8000
    s_add_u32 s53, s14, 0xc000
    s_lshl_b32 s54, s58, 11
    s_lshl_b32 s55, s13, 9
    s_add_u32 s54, s54, s55
    s_add_u32 s54, s54, {SP:#x}
    v_lshlrev_b32 v6, 4, v0
    """)
    sos = ["s14", "s15", "s52", "s53"]
    poll([f"buffer_load_dwordx4 v[{16+4*n}:{19+4*n}], v13, s[40:43], {sos[n]} offen sc1" for n in range(4)], 16, 16, 2)
    stamp(5)
    for r in range(4): a(f"v_mul_f32 v{40+r}, v36, v{16+r}")
    for n in range(1, 4):
        for r in range(4): a(f"v_fmac_f32 v{40+r}, v{36+n}, v{16+4*n+r}")
    for m in ["quad_perm:[2,3,0,1]", "row_ror:4", "row_ror:8"]:
        for r in range(4): a(f"v_add_f32_dpp v{40+r}, v{40+r}, v{40+r} {m} row_mask:0xf bank_mask:0xf")
    a(f"""
    v_cvt_pk_bf16_f32 v44, v40, v41
    v_cvt_pk_bf16_f32 v45, v42, v43
    v_mov_b32_dpp v46, v44 quad_perm:[1,0,3,2] row_mask:0xf bank_mask:0xf
    v_mov_b32_dpp v47, v45 quad_perm:[1,0,3,2] row_mask:0xf bank_mask:0xf
    """)
    for d in range(8):
        a(f"v_mfma_f32_16x16x32_bf16 v[{96+4*d}:{99+4*d}], v[44:47], v[{64+4*d}:{67+4*d}], 0")
    for d in range(4): tag(48 + d, 96 + 4 * d, 15)
    a("s_mov_b64 exec, 0xffff")
    a("buffer_store_dwordx4 v[48:51], v6, s[40:43], s54 offen sc1")
    for d in range(4, 8): tag(48 + d, 96 + 4 * d, 15)
    a("buffer_store_dwordx4 v[52:55], v6, s[40:43], s54 offen offset:256 sc1")
    a("s_mov_b64 exec, -1")
    stamp(7)
    finish()

    a(f"""
R_KV:
    s_sub_u32 s56, s3, 4             ; w
    v_lshrrev_b32 v2, 4, v0          ; q
    v_and_b32 v3, 15, v0             ; i / j'
    v_lshlrev_b32 v4, 8, v3
    v_lshl_add_u32 v4, v2, 4, v4     ; K voff
    v_lshlrev_b32 v5, 10, v2
    v_lshl_add_u32 v5, v3, 4, v5     ; V voff
    s_lshl_b32 s12, s4, 23
    s_lshl_b32 s13, s5, 15
    s_add_u32 s12, s12, s13
    s_lshl_b32 s13, s56, 13
    s_add_u32 s12, s12, s13
    s_add_u32 s12, s12, {28672*256}
    s_add_u32 s13, s12, 4096
    s_waitcnt lgkmcnt(0)
    """)
    srd(44, 18, 0x4000000); srd(48, 20, 0x4000000)
    epoch_and_barrier()
    stamp(1)
    for T in range(2):
        for s in range(4):
            r = 64 + 4 * (4 * T + s)
            a(f"buffer_load_dwordx4 v[{r}:{r+3}], v4, s[44:47], s{12+T} offen offset:{s*64} {NT}")
    for t in range(8):
        r = 96 + 4 * t
        a(f"buffer_load_dwordx4 v[{r}:{r+3}], v5, s[48:51], s{12+(t>>2)} offen offset:{(t&3)*256} {NT}")
    a(f"""
    v_mov_b32 v6, {CNT_V}
    v_mov_b32 v7, 1
    s_mov_b64 exec, 1
    ds_add_u32 v6, v7
    s_mov_b64 exec, -1
    """)
    stamp(2)
    lds_spin(QFLAG, 1, 8, sleep=1)
    stamp(3)
    a(f"""
    v_lshrrev_b32 v6, 2, v3
    v_lshlrev_b32 v7, 8, v6
    v_lshl_add_u32 v7, v2, 4, v7
    """)
    for s in range(4): a(f"ds_read_b128 v[{16+4*s}:{19+4*s}], v7 offset:{QL+64*s}")
    a("s_waitcnt lgkmcnt(0) vmcnt(8)")
    for s in range(4):
        for T in range(2):
            r = 64 + 4 * (4 * T + s)
            c = "0" if s == 0 else f"v[{8+4*T}:{11+4*T}]"
            a(f"v_mfma_f32_16x16x32_bf16 v[{8+4*T}:{11+4*T}], v[{r}:{r+3}], v[{16+4*s}:{19+4*s}], {c}")
    a("s_mov_b32 s14, 0x3db504f3")
    for p in range(4): a(f"v_cvt_pk_bf16_f32 v{16+p}, v{8+2*p}, v{9+2*p}")
    for p in range(4):
        a(f"v_lshlrev_b32 v{8+2*p}, 16, v{16+p}")
        a(f"v_and_b32 v{9+2*p}, 0xffff0000, v{16+p}")
    for k in range(8): a(f"v_mul_f32 v{8+k}, s14, v{8+k}")
    for p in range(4): a(f"v_cvt_pk_bf16_f32 v{16+p}, v{8+2*p}, v{9+2*p}")
    for p in range(4):
        a(f"v_lshlrev_b32 v{8+2*p}, 16, v{16+p}")
        a(f"v_and_b32 v{9+2*p}, 0xffff0000, v{16+p}")
    a(f"""
    v_max3_f32 v16, v8, v9, v10
    v_max3_f32 v17, v11, v12, v13
    v_max3_f32 v16, v16, v14, v15
    v_max_f32 v16, v16, v17
    v_lshlrev_b32 v18, 2, v6         ; head*4
    v_mov_b32 v19, {CNT_M}
    v_mov_b32 v20, 1
    s_mov_b32 exec_lo, 0x11111111
    s_mov_b32 exec_hi, 0x11111111
    ds_max_f32 v18, v16 offset:{MX}
    s_mov_b64 exec, 1
    ds_add_u32 v19, v20
    s_mov_b64 exec, -1
    """)
    lds_spin(CNT_M, 4, 21, sleep=0)
    a(f"""
    ds_read_b32 v16, v18 offset:{MX}
    s_mov_b32 s14, {LOG2E:#x}
    s_waitcnt lgkmcnt(0)
    v_mul_f32 v17, s14, v16
    """)
    for k in range(8): a(f"v_fma_f32 v{8+k}, v{8+k}, s14, -v17")
    for k in range(8): a(f"v_exp_f32 v{8+k}, v{8+k}")
    for p in range(4): a(f"v_cvt_pk_bf16_f32 v{24+p}, v{8+2*p}, v{9+2*p}")
    a("v_add_f32 v17, v8, v9")
    for k in range(2, 8): a(f"v_add_f32 v17, v17, v{8+k}")
    a(f"""
    v_lshlrev_b32 v19, 6, v6
    v_lshl_add_u32 v19, v2, 2, v19
    s_lshl_b32 s15, s56, 4
    v_add_u32 v19, s15, v19
    v_mov_b32 v21, {CNT_L}
    s_mov_b32 exec_lo, 0x11111111
    s_mov_b32 exec_hi, 0x11111111
    ds_write_b32 v19, v17 offset:{LT}
    s_mov_b64 exec, 1
    ds_add_rtn_u32 v22, v21, v20
    s_mov_b64 exec, -1
    v_mov_b32 v15, 0xfffff000
    s_waitcnt lgkmcnt(0)
    v_readfirstlane_b32 s15, v22
    s_cmp_lg_u32 s15, 3
    s_cbranch_scc1 KV_noml
    s_mov_b64 exec, 0xf
    v_lshlrev_b32 v19, 6, v0
    ds_read_b128 v[8:11], v19 offset:{LT}
    ds_read_b128 v[28:31], v19 offset:{LT+16}
    ds_read_b128 v[64:67], v19 offset:{LT+32}
    ds_read_b128 v[68:71], v19 offset:{LT+48}
    v_lshlrev_b32 v21, 2, v0
    ds_read_b32 v16, v21 offset:{MX}
    v_lshlrev_b32 v19, 9, v0         ; h*512
    s_lshl_b32 s14, s4, 11
    s_lshl_b32 s15, s5, 4
    s_add_u32 s14, s14, s15
    s_add_u32 s14, s14, {ML:#x}
    s_waitcnt lgkmcnt(0)
    """)
    for r in range(4):
        a(f"v_add_f32 v{8+r}, v{8+r}, v{28+r}")
        a(f"v_add_f32 v{64+r}, v{64+r}, v{68+r}")
    for r in range(4): a(f"v_add_f32 v{8+r}, v{8+r}, v{64+r}")
    a("v_add_f32 v8, v8, v9")
    a("v_add_f32 v10, v10, v11")
    a("v_add_f32 v17, v8, v10")
    tag(8, 16, 15); tag(9, 17, 15)
    a("v_mov_b32 v10, v8")
    a("v_mov_b32 v11, v9")
    a("buffer_store_dwordx4 v[8:11], v19, s[40:43], s14 offen sc1")
    a("s_mov_b64 exec, -1")
    a("s_waitcnt vmcnt(1)")
    a("s_branch KV_pv")
    a("KV_noml:")
    a("s_waitcnt vmcnt(0)")
    a("KV_pv:")
    stamp(4)
    vperm_block(96, 32, 60, 61)
    for d in range(8):
        a(f"v_mfma_f32_16x16x32_bf16 v[{64+4*d}:{67+4*d}], v[24:27], v[{32+4*d}:{35+4*d}], 0")
    a(f"""
    v_lshlrev_b32 v19, 5, v0         ; lane*32
    s_cmp_eq_u32 s56, 3
    s_cbranch_scc1 KV_finish
    s_lshl_b32 s14, s56, 11
    v_add_u32 v19, s14, v19
    """)
    for d in range(8): a(f"v_mov_b32 v{96+d}, v{64+4*d}")
    a(f"""
    ds_write_b128 v19, v[96:99] offset:{OPART}
    ds_write_b128 v19, v[100:103] offset:{OPART+16}
    v_mov_b32 v21, {CNT_O}
    s_mov_b64 exec, 1
    ds_add_u32 v21, v20
    s_mov_b64 exec, -1
    """)
    stamp(7)
    finish()
    a("KV_finish:")
    a(f"""
    v_lshlrev_b32 v6, 9, v2
    v_lshrrev_b32 v7, 2, v3
    v_lshl_add_u32 v6, v7, 7, v6
    v_and_b32 v7, 3, v3
    v_lshl_add_u32 v6, v7, 4, v6
    s_lshl_b32 s14, s4, 5
    s_add_u32 s14, s14, s5
    s_lshl_b32 s14, s14, 11
    s_add_u32 s14, s14, {OP:#x}
    """)
    stamp(5)
    lds_spin(CNT_O, 3, 21, sleep=0)
    for w in range(3):
        a(f"ds_read_b128 v[{96+8*w}:{99+8*w}], v19 offset:{OPART+2048*w}")
        a(f"ds_read_b128 v[{100+8*w}:{103+8*w}], v19 offset:{OPART+2048*w+16}")
    a("s_waitcnt lgkmcnt(0)")
    for d in range(8):
        a(f"v_add_f32 v{96+d}, v{96+d}, v{104+d}")
        a(f"v_add_f32 v{112+d}, v{112+d}, v{64+4*d}")
    for d in range(8): a(f"v_add_f32 v{96+d}, v{96+d}, v{112+d}")
    for d in range(8): tag(96 + d, 96 + d, 15)
    a("buffer_store_dwordx4 v[96:99], v6, s[40:43], s14 offen sc1")
    a("buffer_store_dwordx4 v[100:103], v6, s[40:43], s14 offen offset:64 sc1")
    stamp(7)
    finish()
    a("L_end:")
    a("s_endpgm")
    a("L_codeend:")
    lines = hazard.fix(a.lines)
    body = "\n".join(lines) + "\n"
    hdr = HEADER
    open(out, "w").write(wrap(body, 256, 512, LDS_BYTES, 128, sgpr=96, header=hdr))

if __name__ == "__main__":
    out = sys.argv[1] if len(sys.argv) > 1 else "k1.s"
    gen(out, nt=(sys.argv[2] if len(sys.argv) > 2 else "nt"), stamps=(len(sys.argv) > 3 and sys.argv[3] == "1"))
```

```python
import sys
from asmlib import *
import hazard
import struct as st_
f2u = lambda f: st_.unpack("<I", st_.pack("<f", f))[0]

QP, HP, ML, OP = 0x10000, 0x20000, 0x80000, 0x40000
FQ = 0x38000
SLOW = 0x100000
SP, YP = 0x200000, 0x240000
STAMPS = 0x8000000
QL, PL, OPART, QPART = 0, 1024, 4096, 4096
HL = 10240
FLG = 10368
QFLAG, CNT_M, CNT_L, CNT_O, CNT_V, TAGW, CNT_E, CNT_K, PF = FLG, FLG+4, FLG+8, FLG+12, FLG+16, FLG+20, FLG+24, FLG+28, FLG+32
MX, LT = FLG + 64, FLG + 128
LDS_BYTES = FLG + 128 + 256
LOG2E = 0x3FB8AA3B
SPIN_MAX = 200000
NW = 9

HEADER = open("recurrent_scan__sliding_block_cached__dense_activation_gelu__decode.s.ref").read().split("; Override launch geometry")[0]

def gen(out, nt="nt", stamps=False, opts=None):
    opts = opts or {}
    a = Asm()
    NT = nt
    def stamp(k):
        if stamps:
            a(f"s_memrealtime s[{64+2*k}:{65+2*k}]")
    def srd(d, p, size):
        a(f"s_mov_b32 s{d}, s{p}")
        a(f"s_mov_b32 s{d+1}, s{p+1}")
        a(f"s_mov_b32 s{d+2}, {size:#x}")
        a(f"s_mov_b32 s{d+3}, 0x20000")
    def rne(dst, src):
        a(f"v_cvt_pk_bf16_f32 v{dst}, v{src}, v{src}")
        a(f"v_lshlrev_b32 v{dst}, 16, v{dst}")
    def epoch_load():
        a("s_load_dword s6, s[40:41], 0")
    def epoch_use():
        a("s_add_u32 s8, s6, 1")
        a("s_and_b32 s7, s8, 0xfff")
    def flag_prep(base):
        a("s_and_b32 s90, s8, 0xff")
        a("s_mul_i32 s90, s90, 0x01010101")
        a("s_mov_b32 s91, s90")
        a(f"s_lshl_b32 s92, s4, 11")
        a(f"s_add_u32 s92, s92, {base:#x}")
    def flag_store(vt):
        a(f"s_add_u32 s15, s92, s63")
        a("s_mov_b64 exec, 0xffff")
        a(f"buffer_store_byte v{vt+1}, v{vt}, s[40:43], s15 offen")
        a("s_mov_b64 exec, -1")
    def hint_wait(sleep=0):
        L = a.label("HINT"); Lx = a.label("HINTX")
        a("s_add_u32 s93, s92, 2048")
        a(f"{L}:")
        a("s_load_dwordx8 s[16:23], s[40:41], s92")
        a("s_add_u32 s92, s92, 128")
        if sleep: a(f"s_sleep {sleep}")
        a("s_waitcnt lgkmcnt(0)")
        a("s_cmp_ge_u32 s92, s93")
        a(f"s_cbranch_scc1 {Lx}")
        for k in range(4): a(f"s_xor_b64 s[{16+2*k}:{17+2*k}], s[{16+2*k}:{17+2*k}], s[90:91]")
        a("s_or_b64 s[16:17], s[16:17], s[18:19]")
        a("s_or_b64 s[20:21], s[20:21], s[22:23]")
        a("s_or_b64 s[16:17], s[16:17], s[20:21]")
        a(f"s_cbranch_scc1 {L}")
        a(f"{Lx}:")
    def lds_add1(addr, va, vb):
        a(f"v_mov_b32 v{va}, {addr}")
        a(f"v_mov_b32 v{vb}, 1")
        a("s_mov_b64 exec, 1")
        a(f"ds_add_u32 v{va}, v{vb}")
        a("s_mov_b64 exec, -1")
    def lds_spin(addr, val, vt, sleep=1):
        L = a.label("SPIN"); Lx = a.label("SPINX")
        if isinstance(addr, int): a(f"v_mov_b32 v{vt}, {addr}")
        else: a(f"v_mov_b32 v{vt}, {addr}")
        a("s_mov_b32 s9, 0")
        a(f"{L}:")
        a(f"ds_read_b32 v{vt+1}, v{vt}")
        a("s_add_u32 s9, s9, 1")
        a(f"s_cmp_gt_u32 s9, {SPIN_MAX}")
        a(f"s_cbranch_scc1 {Lx}")
        a("s_waitcnt lgkmcnt(0)")
        a(f"v_readfirstlane_b32 s10, v{vt+1}")
        a(f"s_cmp_ge_u32 s10, {val}")
        a(f"s_cbranch_scc1 {Lx}")
        if sleep: a(f"s_sleep {sleep}")
        a(f"s_branch {L}")
        a(f"{Lx}:")
        a("s_waitcnt lgkmcnt(0)")
    def check(first, nreg, vt):
        for r in range(first, first + nreg):
            a(f"v_xor_b32 v{r}, s7, v{r}")
        a(f"v_or3_b32 v{vt}, v{first}, v{first+1}, v{first+2}")
        r = first + 3
        while r < first + nreg:
            if r + 1 < first + nreg:
                a(f"v_or3_b32 v{vt}, v{vt}, v{r}, v{r+1}"); r += 2
            else:
                a(f"v_or_b32 v{vt}, v{vt}, v{r}"); r += 1
        a(f"v_and_b32 v{vt}, 0xfff, v{vt}")
        a(f"v_cmp_ne_u32 vcc, 0, v{vt}")
    def pick_copy(vaddr, vtmp):
        a("s_and_b32 s10, s9, 31")
        a("s_cmp_eq_u32 s10, 31")
        a(f"s_cselect_b32 s10, {SLOW:#x}, 0")
        a(f"v_add_u32 v{vtmp}, s10, v{vaddr}")
    def poll(loads, first, nreg, vt, sleep=0, dual=None):
        L = a.label("POLL"); Lx = a.label("POLLX")
        a("s_mov_b32 s9, 0")
        a(f"{L}:")
        if dual: pick_copy(*dual)
        for l in loads: a(l)
        a("s_add_u32 s9, s9, 1")
        a("s_waitcnt vmcnt(0)")
        check(first, nreg, vt)
        a(f"s_cbranch_vccz {Lx}")
        a("s_mov_b64 exec, vcc")
        a(f"s_cmp_gt_u32 s9, {SPIN_MAX}")
        a(f"s_cbranch_scc1 {Lx}")
        if sleep: a(f"s_sleep {sleep}")
        a(f"s_branch {L}")
        a(f"{Lx}:")
        a("s_mov_b64 exec, -1")
    def publish(data, vaddr, soff, soff_slow, imm=0):
        a(f"buffer_store_dwordx4 v[{data}:{data+3}], v{vaddr}, s[40:43], {soff} offen offset:{imm}")
        a(f"buffer_store_dwordx4 v[{data}:{data+3}], v{vaddr}, s[40:43], {soff_slow} offen offset:{imm} sc1")
    def tag(dst, src, vmask):
        a(f"v_and_or_b32 v{dst}, v{src}, v{vmask}, s7")
    def layernorm(xraw, f, t, vlds):
        for k in range(4):
            a(f"v_lshlrev_b32 v{f+2*k}, 16, v{xraw+k}")
            a(f"v_and_b32 v{f+2*k+1}, 0xffff0000, v{xraw+k}")
        a(f"v_readlane_b32 s11, v{f}, 0")
        a(f"v_subrev_f32 v{t}, s11, v{f}")
        a(f"v_mul_f32 v{t+1}, v{t}, v{t}")
        for k in range(1, 8):
            a(f"v_subrev_f32 v{t+2}, s11, v{f+k}")
            a(f"v_add_f32 v{t}, v{t}, v{t+2}")
            a(f"v_fmac_f32 v{t+1}, v{t+2}, v{t+2}")
        for m in ["row_ror:1 row_mask:0xf", "row_ror:2 row_mask:0xf", "row_ror:4 row_mask:0xf", "row_ror:8 row_mask:0xf", "row_bcast:15 row_mask:0xa", "row_bcast:31 row_mask:0xc"]:
            a(f"v_add_f32_dpp v{t}, v{t}, v{t} {m} bank_mask:0xf")
            a(f"v_add_f32_dpp v{t+1}, v{t+1}, v{t+1} {m} bank_mask:0xf")
        a(f"v_readlane_b32 s58, v{t}, 63")
        a(f"v_readlane_b32 s59, v{t+1}, 63")
        a(f"v_mov_b32 v{t+2}, 0x3b000000")
        a(f"v_mul_f32 v{t}, s58, v{t+2}")
        a(f"v_mul_f32 v{t+1}, s59, v{t+2}")
        a(f"v_fma_f32 v{t+1}, -v{t}, v{t}, v{t+1}")
        a(f"v_add_f32 v{t}, s11, v{t}")
        a(f"v_max_f32 v{t+1}, 0, v{t+1}")
        a(f"v_cvt_pk_bf16_f32 v{t+1}, v{t}, v{t+1}")
        a(f"v_lshlrev_b32 v{t}, 16, v{t+1}")
        a(f"v_and_b32 v{t+1}, 0xffff0000, v{t+1}")
        a(f"v_add_f32 v{t+1}, 0x3727c5ac, v{t+1}")
        for k in range(4): a(f"v_sub_f32 v{f+k}, v{f+k}, v{t}")
        rne(t + 1, t + 1)
        for k in range(4, 8): a(f"v_sub_f32 v{f+k}, v{f+k}, v{t}")
        a(f"v_sqrt_f32 v{t+1}, v{t+1}")
        for k in range(4):
            a(f"v_cvt_pk_bf16_f32 v{xraw+k}, v{f+2*k}, v{f+2*k+1}")
        rne(t + 1, t + 1)
        a(f"v_rcp_f32 v{t+1}, v{t+1}")
        for k in range(4):
            a(f"v_lshlrev_b32 v{f+2*k}, 16, v{xraw+k}")
            a(f"v_and_b32 v{f+2*k+1}, 0xffff0000, v{xraw+k}")
        for k in range(8): a(f"v_mul_f32 v{f+k}, v{f+k}, v{t+1}")
        for k in range(4):
            a(f"v_cvt_pk_bf16_f32 v{xraw+k}, v{f+2*k}, v{f+2*k+1}")
        a(f"ds_write_b128 v{vlds}, v[{xraw}:{xraw+3}]")
    def selectors(sel, t):
        a(f"v_and_b32 v{t}, 1, v0")
        a(f"v_cmp_eq_u32 vcc, 1, v{t}")
        a(f"v_mov_b32 v{t}, 0x0c0c0100")
        a(f"v_mov_b32 v{t+1}, 0x01000c0c")
        a(f"v_cndmask_b32 v{t+1}, v{t}, v{t+1}, vcc")
        a(f"v_mov_b32 v{t}, 0x0c0c0302")
        a(f"v_mov_b32 v{t+2}, 0x03020c0c")
        a(f"v_cndmask_b32 v{t+2}, v{t}, v{t+2}, vcc")
        a(f"v_bfe_u32 v{t}, v0, 1, 2")
        a(f"v_mov_b32 v{t+3}, 0x0c0c0c0c")
        for r in range(4):
            a(f"v_cmp_eq_u32 vcc, {r}, v{t}")
            a(f"v_cndmask_b32 v{sel+2*r}, v{t+3}, v{t+1}, vcc")
            a(f"v_cndmask_b32 v{sel+2*r+1}, v{t+3}, v{t+2}, vcc")
    def stage1_mfma(n, xp, sel, abuf, D, W, vm_after, hook=None):
        def perms(t):
            A = abuf + 4 * (t & 1)
            for r in range(4):
                a(f"v_perm_b32 v{A+r}, v{xp+t//2}, v{xp+t//2}, v{sel+2*r+(t&1)}")
        perms(0)
        for t in range(n):
            A = abuf + 4 * (t & 1)
            if t + 1 < n: perms(t + 1)
            a(f"s_waitcnt vmcnt({n-1-t+vm_after})")
            if hook: hook(t)
            c = "0" if t == 0 else f"v[{D}:{D+3}]"
            a(f"v_mfma_f32_16x16x32_bf16 v[{D}:{D+3}], v[{A}:{A+3}], v[{W+4*t}:{W+4*t+3}], {c}")
    def fold_halves(D, t):
        for r in range(4): a(f"v_mov_b32 v{t+r}, v{D+r}")
        for r in range(4): a(f"v_permlane32_swap_b32 v{D+r}, v{t+r}")
        for r in range(4): a(f"v_add_f32_dpp v{D+r}, v{t+r}, v{D+r} row_ror:8 row_mask:0xf bank_mask:0xf")
    def vperm_one(raw, outb, tp, d):
        w = d >> 1
        a(f"v_perm_b32 v{outb+d*4+tp}, v{raw+(2*tp+1)*4+w}, v{raw+(2*tp)*4+w}, s{60+(d&1)}")
    def vperm_pair(raw, outb, tp):
        for d in range(8): vperm_one(raw, outb, tp, d)
    def tr_reduce4(v0_):
        a(f"v_permlane32_swap_b32 v{v0_}, v{v0_+2}")
        a(f"v_permlane32_swap_b32 v{v0_+1}, v{v0_+3}")
        a(f"v_add_f32 v{v0_}, v{v0_}, v{v0_+2}")
        a(f"v_add_f32 v{v0_+1}, v{v0_+1}, v{v0_+3}")
        a(f"v_permlane16_swap_b32 v{v0_}, v{v0_+1}")
        a(f"v_add_f32 v{v0_}, v{v0_}, v{v0_+1}")
    def finish():
        if stamps:
            a("s_waitcnt lgkmcnt(0)")
            a("s_getreg_b32 s86, hwreg(HW_REG_HW_ID)")
            a(f"s_mul_i32 s12, s2, {NW}")
            a("s_add_u32 s12, s12, s3")
            a("s_lshl_b32 s12, s12, 6")
            a(f"s_add_u32 s12, s12, {STAMPS:#x}")
            a("s_mov_b64 exec, 1")
            a("v_mov_b32 v1, 0")
            for k in range(12):
                a(f"v_mov_b32 v{2+k}, s{64+2*k}")
            for k in range(3):
                a(f"buffer_store_dwordx4 v[{2+4*k}:{5+4*k}], v1, s[40:43], s12 offen offset:{16*k}")
        a("s_endpgm")
    def lds_init():
        a(f"""
        v_lshlrev_b32 v2, 2, v0
        v_mov_b32 v3, 0
        v_mov_b32 v4, 0xff800000
        v_lshrrev_b32 v5, 2, v0
        v_cmp_eq_u32 vcc, {(MX-HL)//16}, v5
        v_cndmask_b32 v3, v3, v4, vcc
        ds_write_b32 v2, v3 offset:{HL}
        """)


    def tail_mfma(A, raw, po, acc, cin):
        vperm_one(raw, po, 3, 0); vperm_one(raw, po, 3, 1); vperm_one(raw, po, 3, 2)
        for d in range(8):
            c = f"v[{acc+4*d}:{acc+4*d+3}]" if cin else "0"
            a(f"v_mfma_f32_16x16x32_bf16 v[{acc+4*d}:{acc+4*d+3}], v[{A}:{A+3}], v[{po+4*d}:{po+4*d+3}], {c}")
            if d + 3 < 8: vperm_one(raw, po, 3, d + 3)
    def code_pf(nslot_shift):
        pass
    a("L_start:")
    if stamps:
        for k in range(1, 12): a(f"s_mov_b32 s{64+2*k}, 0")
    stamp(0)
    a(f"""
    s_cmp_ge_u32 s2, 256
    s_cbranch_scc1 L_end
    s_load_dwordx16 s[16:31], s[0:1], 0
    s_load_dwordx8 s[32:39], s[0:1], 64
    s_load_dwordx2 s[40:41], s[0:1], 96
    v_lshrrev_b32 v1, 6, v0
    v_and_b32 v0, 63, v0
    v_readfirstlane_b32 s3, v1
    s_and_b32 s4, s2, 7              ; g
    s_lshr_b32 s5, s2, 4             ; idx
    s_mov_b32 s42, 0x10000000
    s_mov_b32 s43, 0x20000
    s_mov_b32 s60, 0x05040100
    s_mov_b32 s61, 0x07060302
    s_bitcmp1_b32 s2, 3
    s_cbranch_scc0 T_A
    s_cmp_ge_u32 s3, 8
    s_cbranch_scc1 R_X
    s_cmp_ge_u32 s3, 4
    s_cbranch_scc1 R_WO
    s_cmp_ge_u32 s3, 2
    s_cbranch_scc1 R_B
    """)
    a(f"""
R_Q:
    v_lshlrev_b32 v2, 4, v0
    v_lshrrev_b32 v3, 3, v0
    v_and_b32 v4, 7, v0
    v_lshlrev_b32 v5, 17, v3
    v_lshl_add_u32 v5, v4, 4, v5
    s_lshr_b32 s56, s5, 2            ; kq
    s_and_b32 s13, s5, 3
    s_lshl_b32 s12, s3, 2
    s_add_u32 s13, s13, s12          ; cb
    s_lshl_b32 s14, s56, 20
    s_lshl_b32 s15, s4, 10
    s_add_u32 s14, s14, s15
    s_lshl_b32 s15, s13, 7
    s_add_u32 s14, s14, s15
    s_lshl_b32 s57, s3, 10
    v_add_u32 v7, s57, v2
    s_waitcnt lgkmcnt(0)
    """)
    srd(44, 16, 1024); srd(48, 22, 4194304)
    a("buffer_load_dwordx4 v[16:19], v2, s[44:47], 0 offen")
    for t in range(16):
        a(f"buffer_load_dwordx4 v[{64+4*t}:{67+4*t}], v5, s[48:51], s14 offen {NT}")
        if t < 15: a("s_add_u32 s14, s14, 8192")
    epoch_load()
    a("s_barrier")
    stamp(1)
    selectors(36, 56)
    a("v_mov_b32 v15, 0xfffff000")
    a("s_waitcnt vmcnt(16)")
    stamp(2)
    layernorm(16, 20, 56, 7)
    a("s_lshl_b32 s15, s56, 8")
    a("s_add_u32 s15, s15, s57")
    a("v_lshl_add_u32 v6, v3, 5, s15")
    a(f"ds_read_b128 v[28:31], v6")
    a(f"ds_read_b128 v[32:35], v6 offset:16")
    a(f"""
    v_lshrrev_b32 v6, 4, v0
    v_lshlrev_b32 v6, 4, v6
    v_lshl_add_u32 v6, v4, 5, v6
    s_lshl_b32 s63, s56, 3
    s_add_u32 s63, s63, s13
    s_lshl_b32 s14, s4, 5
    s_add_u32 s14, s14, s63
    s_lshl_b32 s14, s14, 8
    s_add_u32 s14, s14, {QP:#x}
    s_add_u32 s62, s14, {SLOW:#x}
    """)
    a("s_waitcnt lgkmcnt(0)")
    epoch_use()
    flag_prep(FQ)
    a("v_lshlrev_b32 v12, 7, v0")
    a("v_mov_b32 v13, s90")
    lds_spin(CNT_E, 6, 8, sleep=0)
    stamp(8)
    stage1_mfma(16, 28, 36, 44, 52, 64, 0)
    fold_halves(52, 56)
    for r in range(4): tag(52 + r, 52 + r, 15)
    a("s_mov_b64 exec, 0x00ff00ff")
    a("buffer_store_dwordx4 v[52:55], v6, s[40:43], s14 offen")
    flag_store(12)
    a("s_mov_b64 exec, 0x00ff00ff")
    a("buffer_store_dwordx4 v[52:55], v6, s[40:43], s62 offen sc1")
    a("s_mov_b64 exec, -1")
    lds_add1(CNT_K, 8, 9)
    stamp(3)
    finish()

    a("R_X:")
    lds_init()
    a(f"""
    s_getpc_b64 s[12:13]
L_pc:
    s_sub_u32 s12, s12, L_pc-L_start
    s_subb_u32 s13, s13, 0
    s_lshl_b32 s14, s5, 10
    s_min_u32 s14, s14, L_codeend-L_start-900
    s_waitcnt lgkmcnt(0)
    s_barrier
    """)
    if opts.get("pf", 1):
        for k in range(8):
            a(f"s_load_dword s{16+k}, s[12:13], s14")
            a("s_add_u32 s14, s14, 128")
    a("s_endpgm")

    a(f"""
R_B:
    s_lshl_b32 s5, s5, 1
    s_add_u32 s5, s5, s3
    s_sub_u32 s5, s5, 2
    v_lshlrev_b32 v2, 4, v0
    v_lshrrev_b32 v3, 3, v0
    v_and_b32 v4, 7, v0
    v_mul_u32_u24 v5, {8*3584}, v3
    v_lshl_add_u32 v5, v4, 4, v5
    s_lshr_b32 s12, s5, 2
    s_and_b32 s13, s5, 3
    s_and_b32 s14, s4, 1
    s_xor_b32 s15, s14, 1
    s_mul_i32 s15, s15, 3
    s_xor_b32 s14, s14, 1
    s_cmp_eq_u32 s13, s15
    s_cselect_b32 s14, s14, 2
    v_lshrrev_b32 v6, 2, v4
    v_cmp_eq_u32 vcc, s14, v6
    v_mov_b32 v7, 0x7fffff00
    v_cndmask_b32 v5, v5, v7, vcc
    s_mul_i32 s14, s4, 7
    s_lshr_b32 s14, s14, 1
    s_add_u32 s14, s14, s13
    s_lshl_b32 s14, s14, 7
    s_mul_i32 s15, s12, {64*3584}
    s_add_u32 s14, s14, s15          ; w1 soffset
    v_lshrrev_b32 v8, 4, v0
    v_and_b32 v9, 15, v0
    v_lshlrev_b32 v10, 13, v8
    v_lshl_add_u32 v10, v9, 4, v10
    v_cmp_eq_u32 vcc, 3, v8
    v_cndmask_b32 v11, v10, v7, vcc
    s_lshl_b32 s56, s4, 3
    s_add_u32 s56, s56, s12          ; kc
    s_mul_i32 s57, s56, {28*1024}
    s_lshl_b32 s15, s13, 8
    s_add_u32 s57, s57, s15          ; w2 soffset
    s_add_u32 s92, s57, 4096
    v_min_u32 v12, 6, v4
    v_lshl_add_u32 v13, v12, 2, v8
    v_lshlrev_b32 v13, 1, v13
    s_mul_i32 s15, s56, 56
    s_lshl_b32 s62, s3, 10
    v_add_u32 v7, s62, v2
    s_and_b32 s63, s3, 1
    s_lshl_b32 s63, s63, 6
    s_waitcnt lgkmcnt(0)
    """)
    srd(44, 16, 1024); srd(48, 28, 1835008); srd(52, 32, 1835008)
    epoch_load()
    a("s_barrier")
    a("s_waitcnt lgkmcnt(0)")
    epoch_use()
    lds_add1(CNT_E, 56, 57)
    selectors(36, 56)
    a("v_mov_b32 v15, 0xfffff000")
    lds_spin(CNT_K, 2, 56, sleep=1)
    a("buffer_load_dwordx4 v[16:19], v2, s[44:47], 0 offen")
    srd(44, 30, 3584)
    a("buffer_load_ushort v14, v13, s[44:47], s15 offen")
    a("v_add_u32 v13, s63, v13")
    for t in range(8):
        a(f"buffer_load_dwordx4 v[{64+4*t}:{67+4*t}], v5, s[48:51], s14 offen {NT}")
        if t < 7: a("s_add_u32 s14, s14, 3584")
    stamp(1)
    a("s_waitcnt vmcnt(8)")
    layernorm(16, 20, 56, 7)
    a("s_lshl_b32 s15, s12, 7")
    a("s_add_u32 s15, s15, s62")
    a("v_lshl_add_u32 v6, v3, 4, s15")
    a(f"ds_read_b128 v[28:31], v6")
    a(f"""
    v_lshrrev_b32 v6, 4, v0
    v_lshlrev_b32 v6, 4, v6
    v_lshl_add_u32 v6, v4, 5, v6
    s_lshl_b32 s14, s56, 10
    s_lshl_b32 s15, s13, 8
    s_add_u32 s14, s14, s15
    s_add_u32 s14, s14, {HP:#x}
    s_add_u32 s15, s14, {SLOW:#x}
    """)
    a("s_waitcnt lgkmcnt(0)")
    stamp(2)
    stage1_mfma(8, 28, 36, 44, 52, 64, 0)
    fold_halves(52, 56)
    for r in range(4): tag(52 + r, 52 + r, 15)
    a("s_mov_b64 exec, 0x00ff00ff")
    publish(52, 6, "s14", "s15")
    a("s_mov_b64 exec, -1")
    lds_add1(CNT_K, 56, 57)
    stamp(3)
    for t in range(8):
        vo, so = ("v10", "s57") if t < 4 else ("v11", "s92")
        a(f"buffer_load_dwordx4 v[{96+4*t}:{99+4*t}], {vo}, s[52:55], {so} offen offset:{(t&3)*1024} {NT}")
    a(f"""
    v_lshlrev_b32 v6, 10, v3
    v_lshl_add_u32 v6, v12, 4, v6
    s_lshl_b32 s14, s4, 13
    s_and_b32 s15, s4, 1
    s_lshl_b32 s15, s15, 7
    s_add_u32 s14, s14, s15
    s_mul_i32 s15, s12, 112
    s_add_u32 s14, s14, s15
    s_add_u32 s14, s14, {HP:#x}
    """)
    for tp in range(4):
        a(f"s_waitcnt vmcnt({6-2*tp})")
        if tp == 0: lds_add1(CNT_K, 56, 57)
        vperm_pair(96, 64, tp)
    stamp(8)
    poll([f"buffer_load_dwordx4 v[20:23], v5, s[40:43], s14 offen sc1"], 20, 4, 7, sleep=1, dual=(6, 5))
    stamp(4)
    tr_reduce4(20)
    a("v_add_f32_dpp v20, v20, v20 row_ror:8 row_mask:0xf bank_mask:0xf")
    a("v_lshlrev_b32 v14, 16, v14")
    rne(20, 20)
    a("v_add_f32 v20, v20, v14")
    rne(20, 20)
    c0 = -2.0 * 0.7978845608028654 * 1.4426950408889634
    a(f"""
    v_mul_f32 v21, v20, v20
    v_mov_b32 v22, {f2u(c0):#x}
    v_mov_b32 v23, {f2u(c0*0.044715):#x}
    v_fma_f32 v21, v21, v23, v22
    v_mul_f32 v21, v21, v20
    v_exp_f32 v21, v21
    v_add_f32 v21, 1.0, v21
    v_rcp_f32 v21, v21
    v_mul_f32 v20, v20, v21
    v_cvt_pk_bf16_f32 v20, v20, v20
    ds_write_b16 v13, v20 offset:{HL}
    v_lshl_add_u32 v6, v8, 4, s63
    ds_read_b128 v[24:27], v6 offset:{HL}
    v_lshlrev_b32 v6, 4, v0
    s_lshl_b32 s14, s56, 11
    s_lshl_b32 s15, s13, 9
    s_add_u32 s14, s14, s15
    s_add_u32 s14, s14, {YP:#x}
    s_waitcnt lgkmcnt(0)
    """)
    for d in range(8):
        a(f"v_mfma_f32_16x16x32_bf16 v[{96+4*d}:{99+4*d}], v[24:27], v[{64+4*d}:{67+4*d}], 0")
    for d in range(8): tag(28 + d, 96 + 4 * d, 15)
    a("s_mov_b64 exec, 0xffff")
    a("buffer_store_dwordx4 v[28:31], v6, s[40:43], s14 offen sc1")
    a("buffer_store_dwordx4 v[32:35], v6, s[40:43], s14 offen offset:256 sc1")
    a("s_mov_b64 exec, -1")
    stamp(7)
    finish()

    a(f"""
R_WO:
    s_sub_u32 s13, s3, 4             ; cc
    s_lshl_b32 s62, s4, 19
    s_lshl_b32 s15, s5, 13
    s_add_u32 s62, s62, s15
    s_lshl_b32 s15, s13, 8
    s_add_u32 s62, s62, s15
    s_add_u32 s63, s62, 4096
    v_lshrrev_b32 v8, 4, v0
    v_and_b32 v9, 15, v0
    v_lshlrev_b32 v10, 17, v8
    v_lshl_add_u32 v10, v9, 4, v10
    v_bfe_u32 v11, v0, 1, 3          ; sub
    v_and_b32 v12, 1, v0
    v_lshlrev_b32 v13, 11, v11
    v_lshl_add_u32 v13, v12, 6, v13
    v_lshl_add_u32 v13, v8, 4, v13
    v_lshlrev_b32 v14, 5, v11
    v_lshl_add_u32 v14, v8, 3, v14
    v_mov_b32 v15, 0xfffff000
    s_lshl_b32 s14, s4, 4
    s_add_u32 s14, s14, s5
    s_lshl_b32 s14, s14, 9
    s_add_u32 s14, s14, {ML:#x}
    s_lshl_b32 s52, s5, 7
    s_lshl_b32 s15, s4, 15
    s_add_u32 s52, s52, s15
    s_add_u32 s52, s52, {OP:#x}      ; o soffset
    s_add_u32 s53, s52, 0x4000
    s_lshl_b32 s58, s4, 4
    s_add_u32 s58, s58, s5
    s_lshl_b32 s58, s58, 11
    s_lshl_b32 s59, s13, 9
    s_add_u32 s58, s58, s59
    s_add_u32 s58, s58, {SP:#x}
    v_lshlrev_b32 v6, 4, v0
    s_waitcnt lgkmcnt(0)
    """)
    srd(48, 24, 4194304)
    epoch_load()
    a("s_barrier")
    stamp(1)
    a("s_waitcnt lgkmcnt(0)")
    epoch_use()
    lds_add1(CNT_E, 2, 3)
    r0, r1 = opts.get("wo_rel", (4, 6))
    a("s_cmp_lt_u32 s13, 2")
    a(f"s_cselect_b32 s59, {r0}, {r1}")
    lds_spin(CNT_K, "s59", 2, sleep=2)
    stamp(2)
    for t in range(8):
        so = "s62" if t < 4 else "s63"
        a(f"buffer_load_dwordx4 v[{96+4*t}:{99+4*t}], v10, s[48:51], {so} offen offset:{(t&3)*1024} {NT}")
    for tp in range(4):
        a(f"s_waitcnt vmcnt({6-2*tp})")
        if tp == 0: lds_add1(CNT_K, 2, 3)
        vperm_pair(96, 64, tp)
    stamp(3)
    L = "WO_poll"
    a("s_mov_b32 s9, 0")
    a(f"{L}:")
    a("s_and_b32 s10, s9, 63")
    a("s_cmp_eq_u32 s10, 63")
    a(f"s_cselect_b32 s10, {SLOW:#x}, 0")
    a("v_add_u32 v4, s10, v14")
    a("v_add_u32 v5, s10, v13")
    for n in range(2): a(f"buffer_load_dwordx2 v[{16+2*n}:{17+2*n}], v4, s[40:43], s14 offen offset:{n*256} sc1")
    for n in range(2): a(f"buffer_load_dwordx4 v[{20+4*n}:{23+4*n}], v5, s[40:43], s{52+n} offen sc1")
    a("s_add_u32 s9, s9, 1")
    a("s_waitcnt vmcnt(0)")
    check(16, 12, 2)
    a("s_cbranch_vccz WO_ok")
    a("s_mov_b64 exec, vcc")
    a(f"s_cmp_lt_u32 s9, {SPIN_MAX}")
    a(f"s_cbranch_scc1 {L}")
    a("WO_ok:")
    a("s_mov_b64 exec, -1")
    stamp(5)
    a(f"""
    v_max_f32 v48, v16, v18
    v_max_f32_dpp v48, v48, v48 quad_perm:[2,3,0,1] row_mask:0xf bank_mask:0xf
    v_max_f32_dpp v48, v48, v48 row_ror:4 row_mask:0xf bank_mask:0xf
    v_max_f32_dpp v48, v48, v48 row_ror:8 row_mask:0xf bank_mask:0xf
    """)
    for n in range(2): a(f"v_sub_f32 v{52+n}, v{16+2*n}, v48")
    for n in range(2): a(f"v_mul_f32 v{52+n}, {LOG2E:#x}, v{52+n}")
    for n in range(2): a(f"v_exp_f32 v{52+n}, v{52+n}")
    a("v_mul_f32 v49, v52, v17")
    for r in range(4): a(f"v_mul_f32 v{56+r}, v52, v{20+r}")
    a("v_fmac_f32 v49, v53, v19")
    for r in range(4): a(f"v_fmac_f32 v{56+r}, v53, v{24+r}")
    for m in ["quad_perm:[2,3,0,1]", "row_ror:4", "row_ror:8"]:
        a(f"v_add_f32_dpp v49, v49, v49 {m} row_mask:0xf bank_mask:0xf")
        if m == "row_ror:8": a("v_rcp_f32 v49, v49")
        for r in range(4): a(f"v_add_f32_dpp v{56+r}, v{56+r}, v{56+r} {m} row_mask:0xf bank_mask:0xf")
    for r in range(4): a(f"v_mul_f32 v{56+r}, v{56+r}, v49")
    a(f"""
    v_cvt_pk_bf16_f32 v60, v56, v57
    v_cvt_pk_bf16_f32 v61, v58, v59
    v_mov_b32_dpp v62, v60 quad_perm:[1,0,3,2] row_mask:0xf bank_mask:0xf
    v_mov_b32_dpp v63, v61 quad_perm:[1,0,3,2] row_mask:0xf bank_mask:0xf
    """)
    for d in range(8):
        a(f"v_mfma_f32_16x16x32_bf16 v[{96+4*d}:{99+4*d}], v[60:63], v[{64+4*d}:{67+4*d}], 0")
    for d in range(4): tag(16 + d, 96 + 4 * d, 15)
    a("s_mov_b64 exec, 0xffff")
    a("buffer_store_dwordx4 v[16:19], v6, s[40:43], s58 offen sc1")
    for d in range(4, 8): tag(16 + d, 96 + 4 * d, 15)
    a("buffer_store_dwordx4 v[20:23], v6, s[40:43], s58 offen offset:256 sc1")
    a("s_mov_b64 exec, -1")
    stamp(7)
    finish()

    a(f"""
T_A:
    s_cmp_ge_u32 s3, 5
    s_cbranch_scc1 R_V
    s_cmp_ge_u32 s3, 1
    s_cbranch_scc1 R_K
    """)
    a("R_P:")
    a("s_setprio 3")
    lds_init()
    a(f"""
    v_lshlrev_b32 v2, 7, v0
    s_lshl_b32 s15, s4, 4
    s_add_u32 s15, s15, s5           ; g*16+idx
    s_lshl_b32 s10, s15, 11
    s_add_u32 s10, s10, {OP:#x}
    v_add_u32 v3, s10, v2
    s_lshl_b32 s10, s15, 9
    s_add_u32 s11, s10, {QP - 16*128:#x}
    v_add_u32 v4, s11, v2
    v_cmp_lt_u32 vcc, 15, v0
    v_cndmask_b32 v3, v3, v4, vcc
    s_add_u32 s11, s10, {HP - 20*128:#x}
    v_add_u32 v4, s11, v2
    v_cmp_lt_u32 vcc, 19, v0
    v_cndmask_b32 v3, v3, v4, vcc
    s_lshl_b32 s10, s15, 7
    s_add_u32 s10, s10, {FQ:#x}
    v_mov_b32 v4, s10
    v_cmp_lt_u32 vcc, 23, v0
    v_cndmask_b32 v3, v3, v4, vcc
    v_lshlrev_b32 v2, 4, v0
    s_lshl_b32 s14, s4, 13
    s_add_u32 s14, s14, {QP:#x}
    s_add_u32 s15, s14, 4096
    s_waitcnt lgkmcnt(0)
    s_mov_b64 exec, 0x1ffffff
    buffer_load_dword v5, v3, s[40:43], 0 offen {opts.get('warm_flags', 'sc1')}
    s_mov_b64 exec, -1
    """)
    epoch_load()
    srd(44, 16, 1024); srd(48, 34, 1024); srd(52, 36, 1024)
    if opts.get("a_start", "warm") == "warm": a("s_waitcnt vmcnt(0)")
    a("s_barrier")
    stamp(1)
    a("s_waitcnt vmcnt(0) lgkmcnt(0)")
    epoch_use()
    flag_prep(FQ)
    a(f"s_sleep {opts.get('hint_d0', 12)}")
    stamp(2)
    hint_wait(opts.get("hint_sleep", 3))
    stamp(5)
    ql = lambda va: [f"buffer_load_dwordx4 v[{64+4*n}:{67+4*n}], v{va}, s[40:43], {'s14' if n < 4 else 's15'} offen offset:{(n&3)*1024} sc1" for n in range(8)]
    for l in ql(2): a(l)
    lds_add1(CNT_K, 8, 9)
    a("s_waitcnt vmcnt(0)")
    check(64, 32, 6)
    a("s_cbranch_vccz P_ok")
    a("s_mov_b64 exec, vcc")
    poll(ql(5), 64, 32, 6, dual=(2, 5))
    a("P_ok:")
    for r in range(8):
        a(f"v_add_f32 v{24+r}, v{64+r}, v{72+r}")
        a(f"v_add_f32 v{32+r}, v{80+r}, v{88+r}")
    for r in range(8): a(f"v_add_f32 v{24+r}, v{24+r}, v{32+r}")
    stamp(4)
    a(f"""
    v_cvt_pk_bf16_f32 v20, v24, v25
    v_cvt_pk_bf16_f32 v21, v26, v27
    v_cvt_pk_bf16_f32 v22, v28, v29
    v_cvt_pk_bf16_f32 v23, v30, v31
    v_lshlrev_b32 v6, 3, v0
    ds_write_b64 v6, v[20:21] offset:{QL}
    ds_write_b64 v6, v[22:23] offset:{QL+512}
    v_mov_b32 v7, {QFLAG}
    v_mov_b32 v8, s7
    ds_write_b32 v7, v8 offset:{TAGW-QFLAG}
    v_mov_b32 v8, 1
    ds_write_b32 v7, v8
    """)
    a(f"""
    s_and_b32 s12, s5, 8
    s_add_u32 s12, s12, s4
    s_lshl_b32 s12, s12, 7
    s_and_b32 s13, s5, 7
    s_lshl_b32 s13, s13, 4
    s_add_u32 s12, s12, s13          ; pos
    s_lshr_b32 s13, s12, 9           ; cc
    s_lshl_b32 s13, s13, 7
    s_bfe_u32 s14, s12, 0x40004      ; j'
    s_lshl_b32 s14, s14, 3
    s_add_u32 s13, s13, s14
    s_bfe_u32 s14, s12, 0x10008      ; G
    s_lshl_b32 s14, s14, 2
    s_add_u32 s13, s13, s14          ; col0
    s_lshl_b32 s13, s13, 1
    v_lshrrev_b32 v9, 4, v0
    v_lshlrev_b32 v9, 1, v9
    v_lshlrev_b32 v10, 11, v0
    buffer_load_ushort v11, v9, s[44:47], s13 offen
    buffer_load_ushort v12, v9, s[48:51], s13 offen
    s_add_u32 s14, s12, {SP:#x}
    s_add_u32 s15, s14, 0x20000
    s_add_u32 s56, s12, {YP:#x}
    """)
    lds_spin(CNT_V, 5, 6, sleep=2)
    stamp(8)
    poll([f"buffer_load_dwordx4 v[72:75], v10, s[40:43], s56 offen sc1"], 72, 4, 6, sleep=1)
    stamp(9)
    tr_reduce4(72)
    for sh in (8, 4, 2, 1):
        a(f"v_add_f32_dpp v72, v72, v72 row_ror:{sh} row_mask:0xf bank_mask:0xf")
    a("v_lshlrev_b32 v11, 16, v11")
    a("v_lshlrev_b32 v12, 16, v12")
    rne(72, 72)
    a("v_add_f32 v72, v72, v12")
    rne(72, 72)
    a(f"v_mul_f32 v13, {LOG2E ^ 0x80000000:#x}, v72")
    a("v_exp_f32 v13, v13")
    a("v_add_f32 v13, 1.0, v13")
    a("v_rcp_f32 v13, v13")
    a("v_mul_f32 v13, v72, v13")
    rne(13, 13)
    poll([f"buffer_load_dwordx4 v[64:67], v10, s[40:43], s14 offen sc1",
          f"buffer_load_dwordx4 v[68:71], v10, s[40:43], s15 offen sc1"], 64, 8, 6, sleep=opts.get("s_sleep", 0))
    stamp(6)
    for r in range(4): a(f"v_add_f32 v{64+r}, v{64+r}, v{68+r}")
    tr_reduce4(64)
    for sh in (8, 4, 2, 1):
        a(f"v_add_f32_dpp v64, v64, v64 row_ror:{sh} row_mask:0xf bank_mask:0xf")
    rne(64, 64)
    a("v_mul_f32 v64, v64, v13")
    rne(64, 64)
    a("v_add_f32 v64, v64, v11")
    a("v_cvt_pk_bf16_f32 v64, v64, v64")
    a("s_mov_b32 exec_lo, 0x00010001")
    a("s_mov_b32 exec_hi, 0x00010001")
    a("buffer_store_short v64, v9, s[52:55], s13 offen")
    a(f"""
    s_cmp_lg_u32 s2, 0
    s_cbranch_scc1 L_fin
    s_mov_b64 exec, 1
    v_mov_b32 v6, 0
    v_mov_b32 v7, s8
    buffer_store_dword v7, v6, s[40:43], 0 offen
    """)
    a("L_fin:")
    stamp(7)
    finish()

    def kv_base(wsub):
        a(f"""
        s_sub_u32 s56, s3, {wsub}        ; w
        v_lshrrev_b32 v2, 4, v0          ; q
        v_and_b32 v3, 15, v0             ; i / j'
        s_lshl_b32 s12, s4, 23
        s_lshl_b32 s13, s5, 12
        s_add_u32 s12, s12, s13
        s_lshl_b32 s13, s56, 10
        s_add_u32 s12, s12, s13
        s_add_u32 s12, s12, {28672*256}
        """)
    a("R_K:")
    kv_base(1)
    a(f"""
    v_lshlrev_b32 v4, 6, v3
    v_lshl_add_u32 v4, v2, 4, v4
    v_lshrrev_b32 v6, 2, v3          ; head
    s_mov_b32 s52, 0xaaaaaaaa
    s_mov_b32 s53, 0xaaaaaaaa
    s_mov_b32 s54, 0xcccccccc
    s_mov_b32 s55, 0xcccccccc
    v_lshlrev_b32 v10, 2, v6         ; head*4
    v_mov_b32 v12, 1
    v_lshlrev_b32 v11, 6, v6
    v_lshl_add_u32 v11, v2, 2, v11
    s_lshl_b32 s15, s56, 4
    v_add_u32 v11, s15, v11
    v_lshlrev_b32 v13, 6, v6
    v_lshl_add_u32 v13, v2, 4, v13
    v_bfe_u32 v5, v0, 1, 1
    v_lshl_add_u32 v13, v5, 8, v13
    v_and_b32 v5, 1, v0
    v_lshl_add_u32 v13, v5, 3, v13
    s_lshl_b32 s15, s56, 9
    v_add_u32 v13, s15, v13
    s_lshl_b32 s15, s56, 2
    s_add_u32 s15, s15, {PF}
    v_mov_b32 v14, s15
    v_mov_b32 v5, {CNT_L}
    v_mov_b32 v7, {CNT_M}
    s_waitcnt lgkmcnt(0)
    """)
    srd(44, 18, 0x4000000)
    a("s_barrier")
    stamp(1)
    for n in range(16):
        a(f"buffer_load_dwordx4 v[{64+4*n}:{67+4*n}], v4, s[44:47], s12 offen {NT}")
        if n < 15: a("s_add_u32 s12, s12, 0x10000")
    lds_add1(CNT_E, 8, 9)
    stamp(2)
    if opts.get("gate", 1):
        a(f"s_waitcnt vmcnt({opts.get('gate_k', 4)})")
        lds_add1(CNT_K, 8, 9)
    lds_spin(QFLAG, 1, 8, sleep=1)
    stamp(3)
    a(f"ds_read_b128 v[60:63], v4 offset:{QL}")
    a("s_waitcnt lgkmcnt(0)")
    def Dreg(n):
        return 32 + 4 * (n & 3) if (n >> 2) == 0 else 64 + 4 * (n - 4)
    def red4(n0):
        for r in range(4):
            for n in range(n0, n0 + 4):
                D = Dreg(n)
                if r == 0: a(f"v_mov_b32_dpp v{16+n}, v{D} quad_perm:[0,0,0,0] row_mask:0xf bank_mask:0xf")
                else: a(f"v_add_f32_dpp v{16+n}, v{D+r}, v{16+n} quad_perm:[{r},{r},{r},{r}] row_mask:0xf bank_mask:0xf")
    for n in range(16):
        D = Dreg(n)
        a(f"s_waitcnt vmcnt({15-n})")
        a(f"v_mfma_f32_16x16x32_bf16 v[{D}:{D+3}], v[{64+4*n}:{67+4*n}], v[60:63], 0")
        if n & 3 == 3 and n >= 7: red4(n - 7)
    red4(12)
    stamp(8)
    for i in range(4):
        a(f"v_cndmask_b32 v{32+i}, v{16+i}, v{20+i}, s[52:53]")
        a(f"v_cndmask_b32 v{36+i}, v{24+i}, v{28+i}, s[52:53]")
    for i in range(4): a(f"v_cndmask_b32 v{16+i}, v{32+i}, v{36+i}, s[54:55]")
    a("s_mov_b32 s14, 0x3db504f3")
    for rep in range(2):
        for p in range(2): a(f"v_cvt_pk_bf16_f32 v{32+p}, v{16+2*p}, v{17+2*p}")
        for p in range(2):
            a(f"v_lshlrev_b32 v{16+2*p}, 16, v{32+p}")
            a(f"v_and_b32 v{17+2*p}, 0xffff0000, v{32+p}")
        if rep == 0:
            for k in range(4): a(f"v_mul_f32 v{16+k}, s14, v{16+k}")
    a(f"""
    v_max3_f32 v8, v16, v17, v18
    v_max_f32 v8, v8, v19
    v_max_f32_dpp v8, v8, v8 quad_perm:[1,0,3,2] row_mask:0xf bank_mask:0xf
    v_max_f32_dpp v8, v8, v8 quad_perm:[2,3,0,1] row_mask:0xf bank_mask:0xf
    s_mov_b32 exec_lo, 0x11111111
    s_mov_b32 exec_hi, 0x11111111
    ds_max_f32 v10, v8 offset:{MX}
    s_mov_b64 exec, 1
    ds_add_u32 v7, v12
    s_mov_b64 exec, -1
    """)
    lds_spin(CNT_M, 4, 20, sleep=0)
    a(f"""
    ds_read_b32 v8, v10 offset:{MX}
    s_mov_b32 s14, {LOG2E:#x}
    s_waitcnt lgkmcnt(0)
    v_mul_f32 v9, s14, v8
    """)
    for k in range(4): a(f"v_fma_f32 v{16+k}, v{16+k}, s14, -v9")
    for k in range(4): a(f"v_exp_f32 v{16+k}, v{16+k}")
    for p in range(2): a(f"v_cvt_pk_bf16_f32 v{32+p}, v{16+2*p}, v{17+2*p}")
    a(f"""
    ds_write_b64 v13, v[32:33] offset:{PL}
    s_mov_b64 exec, 1
    ds_write_b32 v14, v12
    s_mov_b64 exec, -1
    v_add_f32 v16, v16, v17
    v_add_f32 v18, v18, v19
    v_add_f32 v16, v16, v18
    v_add_f32_dpp v16, v16, v16 quad_perm:[1,0,3,2] row_mask:0xf bank_mask:0xf
    v_add_f32_dpp v16, v16, v16 quad_perm:[2,3,0,1] row_mask:0xf bank_mask:0xf
    s_mov_b32 exec_lo, 0x11111111
    s_mov_b32 exec_hi, 0x11111111
    ds_write_b32 v11, v16 offset:{LT}
    s_mov_b64 exec, 1
    ds_add_u32 v5, v12
    s_mov_b64 exec, -1
    """)
    stamp(7)
    finish()

    a("R_V:")
    kv_base(5)
    a(f"""
    v_lshlrev_b32 v4, 4, v0          ; V voff
    v_lshrrev_b32 v6, 2, v3
    v_lshlrev_b32 v13, 6, v6
    v_lshl_add_u32 v13, v2, 4, v13
    s_lshl_b32 s15, s56, 9
    v_add_u32 v13, s15, v13          ; P address
    s_lshl_b32 s57, s56, 2
    s_add_u32 s57, s57, {PF}
    v_mov_b32 v15, 0xfffff000
    v_lshlrev_b32 v19, 5, v0         ; lane*32
    v_mov_b32 v20, 1
    s_waitcnt lgkmcnt(0)
    """)
    srd(44, 20, 0x4000000)
    a("s_barrier")
    stamp(1)
    lds_spin(CNT_E, 4, 8, sleep=1)
    vl = opts.get("v_last", 8)
    for n in range(16):
        if opts.get("gate", 1) and n == opts.get("v_pre", 0): lds_spin(CNT_K, 1, 8, sleep=1)
        if vl and n == 16 - vl:
            Lv = a.label("VL")
            a("s_cmp_lg_u32 s56, 3")
            a(f"s_cbranch_scc1 {Lv}")
            lds_spin(CNT_V, 3, 8, sleep=0)
            a(f"{Lv}:")
        a(f"buffer_load_dwordx4 v[{64+4*n}:{67+4*n}], v4, s[44:47], s12 offen {NT}")
        if n < 15: a("s_add_u32 s12, s12, 0x10000")
    lds_add1(CNT_V, 8, 9)
    stamp(2)
    for tp in range(4):
        a(f"s_waitcnt vmcnt({14-2*tp})")
        vperm_pair(64, 32, tp)
    lds_spin("s57", 1, 8, sleep=1)
    stamp(3)
    a(f"ds_read_b128 v[24:27], v13 offset:{PL}")
    a(f"ds_read_b128 v[28:31], v13 offset:{PL+256}")
    a(f"v_mov_b32 v8, {TAGW}")
    a("ds_read_b32 v1, v8")
    a("s_waitcnt lgkmcnt(0)")
    for d in range(8):
        a(f"v_mfma_f32_16x16x32_bf16 v[{64+4*d}:{67+4*d}], v[24:27], v[{32+4*d}:{35+4*d}], 0")
    a("v_readfirstlane_b32 s7, v1")
    stamp(4)
    a("s_cmp_eq_u32 s56, 3")
    a("s_cbranch_scc1 V_finish")
    for tp in range(3):
        a(f"s_waitcnt vmcnt({6-2*tp})")
        vperm_pair(96, 32, tp)
    a("s_waitcnt vmcnt(0)")
    stamp(5)
    tail_mfma(28, 96, 32, 64, True)
    a(f"""
    s_lshl_b32 s14, s56, 11
    v_add_u32 v19, s14, v19
    v_mov_b32 v21, {CNT_O}
    """)
    for d in range(8): a(f"v_mov_b32 v{96+d}, v{64+4*d}")
    a(f"""
    ds_write_b128 v19, v[96:99] offset:{OPART}
    ds_write_b128 v19, v[100:103] offset:{OPART+16}
    s_mov_b64 exec, 1
    ds_add_u32 v21, v20
    s_mov_b64 exec, -1
    """)
    stamp(7)
    finish()
    a("V_finish:")
    a(f"""
    s_setprio 3
    v_lshlrev_b32 v6, 7, v3
    v_lshl_add_u32 v6, v2, 4, v6
    s_lshl_b32 s14, s4, 4
    s_add_u32 s14, s14, s5
    s_lshl_b32 s14, s14, 11
    s_add_u32 s14, s14, {OP:#x}
    s_add_u32 s15, s14, {SLOW:#x}
    v_lshlrev_b32 v22, 2, v0
    v_lshlrev_b32 v23, 2, v2         ; MX[head]
    v_lshlrev_b32 v7, 9, v3
    v_lshl_add_u32 v7, v2, 3, v7     ; x*512 + head*8
    s_lshl_b32 s52, s4, 13
    s_lshl_b32 s53, s5, 5
    s_add_u32 s52, s52, s53
    s_add_u32 s52, s52, {ML:#x}
    s_add_u32 s53, s52, {SLOW:#x}
    """)
    lds_spin(CNT_L, 4, 8, sleep=0)
    a(f"""
    ds_read_b32 v17, v22 offset:{LT}
    ds_read_b32 v16, v23 offset:{MX}
    s_waitcnt lgkmcnt(0)
    """)
    for sh in (8, 4, 2, 1):
        a(f"v_add_f32_dpp v17, v17, v17 row_ror:{sh} row_mask:0xf bank_mask:0xf")
    tag(12, 16, 15); tag(13, 17, 15)
    a("buffer_store_dwordx2 v[12:13], v7, s[40:43], s52 offen")
    for tp in range(3):
        a(f"s_waitcnt vmcnt({7-2*tp})")
        vperm_pair(96, 32, tp)
    lds_spin(CNT_O, 3, 21, sleep=0)
    stamp(6)
    for w in range(3):
        a(f"ds_read_b128 v[{96+8*w}:{99+8*w}], v19 offset:{OPART+2048*w}")
        a(f"ds_read_b128 v[{100+8*w}:{103+8*w}], v19 offset:{OPART+2048*w+16}")
    a("s_waitcnt lgkmcnt(0)")
    for d in range(8): a(f"v_add_f32 v{96+d}, v{96+d}, v{104+d}")
    for d in range(8): a(f"v_add_f32 v{96+d}, v{96+d}, v{112+d}")
    for d in range(8): a(f"v_add_f32 v{64+4*d}, v{64+4*d}, v{96+d}")
    a("s_waitcnt vmcnt(1)")
    stamp(5)
    tail_mfma(28, 96, 32, 64, True)
    for d in range(4): tag(96 + d, 64 + 4 * d, 15)
    a("buffer_store_dwordx4 v[96:99], v6, s[40:43], s14 offen")
    for d in range(4, 8): tag(96 + d, 64 + 4 * d, 15)
    a("buffer_store_dwordx4 v[100:103], v6, s[40:43], s14 offen offset:64")
    a("buffer_store_dwordx4 v[96:99], v6, s[40:43], s15 offen sc1")
    a("buffer_store_dwordx4 v[100:103], v6, s[40:43], s15 offen offset:64 sc1")
    a("buffer_store_dwordx2 v[12:13], v7, s[40:43], s53 offen sc1")
    lds_add1(CNT_V, 8, 9)
    stamp(7)
    finish()
    a("L_end:")
    a("s_endpgm")
    a("L_codeend:")
    lines = hazard.fix(a.lines)
    body = "\n".join(lines) + "\n"
    open(out, "w").write(wrap(body, 256, NW * 64, LDS_BYTES, 128, sgpr=96, header=HEADER))

if __name__ == "__main__":
    out = sys.argv[1] if len(sys.argv) > 1 else "k6.s"
    opts = eval(sys.argv[4]) if len(sys.argv) > 4 else {}
    gen(out, nt=(sys.argv[2] if len(sys.argv) > 2 else "nt"), stamps=(len(sys.argv) > 3 and sys.argv[3] == "1"), opts=opts)
```

```python
import sys
from asmlib import *
import hazard
import struct as st_
f2u = lambda f: st_.unpack("<I", st_.pack("<f", f))[0]

QP, HP, FQ, OP, ML = 0x10000, 0x20000, 0x30000, 0x40000, 0x80000
SLOW = 0x80000
SP, YP = 0x120000, 0x160000
STAMPS = 0x8000000
QL, PL, OPART = 0, 1024, 4096
HL = 12288
FLG = 12416
QFLAG, CNT_M, CNT_L, CNT_O, CNT_V, TAGW, CNT_E, CNT_K, PF = FLG, FLG+4, FLG+8, FLG+12, FLG+16, FLG+20, FLG+24, FLG+28, FLG+32
MX, LT = FLG + 64, FLG + 128
LDS_BYTES = FLG + 128 + 256
LOG2E = 0x3FB8AA3B
SPIN_MAX = 200000
NW = 9

HEADER = open("recurrent_scan__sliding_block_cached__dense_activation_gelu__decode.s.ref").read().split("; Override launch geometry")[0]

def gen(out, nt="nt", stamps=False, opts=None):
    opts = opts or {}
    a = Asm()
    NT = nt
    def stamp(k):
        if stamps:
            a(f"s_memrealtime s[{64+2*k}:{65+2*k}]")
    def srd(d, p, size):
        a(f"s_mov_b32 s{d}, s{p}")
        a(f"s_mov_b32 s{d+1}, s{p+1}")
        a(f"s_mov_b32 s{d+2}, {size:#x}")
        a(f"s_mov_b32 s{d+3}, 0x20000")
    def rne(dst, src):
        a(f"v_cvt_pk_bf16_f32 v{dst}, v{src}, v{src}")
        a(f"v_lshlrev_b32 v{dst}, 16, v{dst}")
    def epoch_load():
        a("s_load_dword s6, s[40:41], 0")
    def epoch_use():
        a("s_add_u32 s8, s6, 1")
        a("s_and_b32 s7, s8, 0xfff")
    def flag_prep(base):
        a("s_and_b32 s90, s8, 0xff")
        a("s_mul_i32 s90, s90, 0x01010101")
        a("s_mov_b32 s91, s90")
        a(f"s_lshl_b32 s92, s4, 13")
        a(f"s_add_u32 s92, s92, {base:#x}")
    def flag_store(vt):
        a(f"s_add_u32 s15, s92, s63")
        a("s_mov_b64 exec, 0xffff")
        a(f"buffer_store_byte v{vt+1}, v{vt}, s[40:43], s15 offen")
        a("s_mov_b64 exec, -1")
    def hint_wait(sleep=0):
        L = a.label("HINT"); Lx = a.label("HINTX")
        a("s_add_u32 s93, s92, 8192")
        a(f"{L}:")
        a("s_load_dwordx8 s[16:23], s[40:41], s92")
        a("s_add_u32 s92, s92, 512")
        if sleep: a(f"s_sleep {sleep}")
        a("s_waitcnt lgkmcnt(0)")
        a("s_cmp_ge_u32 s92, s93")
        a(f"s_cbranch_scc1 {Lx}")
        for k in range(4): a(f"s_xor_b64 s[{16+2*k}:{17+2*k}], s[{16+2*k}:{17+2*k}], s[90:91]")
        a("s_or_b64 s[16:17], s[16:17], s[18:19]")
        a("s_or_b64 s[20:21], s[20:21], s[22:23]")
        a("s_or_b64 s[16:17], s[16:17], s[20:21]")
        a(f"s_cbranch_scc1 {L}")
        a(f"{Lx}:")
    def lds_add1(addr, va, vb):
        a(f"v_mov_b32 v{va}, {addr}")
        a(f"v_mov_b32 v{vb}, 1")
        a("s_mov_b64 exec, 1")
        a(f"ds_add_u32 v{va}, v{vb}")
        a("s_mov_b64 exec, -1")
    def lds_spin(addr, val, vt, sleep=1):
        L = a.label("SPIN"); Lx = a.label("SPINX")
        if isinstance(addr, int): a(f"v_mov_b32 v{vt}, {addr}")
        else: a(f"v_mov_b32 v{vt}, {addr}")
        a("s_mov_b32 s9, 0")
        a(f"{L}:")
        a(f"ds_read_b32 v{vt+1}, v{vt}")
        a("s_add_u32 s9, s9, 1")
        a(f"s_cmp_gt_u32 s9, {SPIN_MAX}")
        a(f"s_cbranch_scc1 {Lx}")
        a("s_waitcnt lgkmcnt(0)")
        a(f"v_readfirstlane_b32 s10, v{vt+1}")
        a(f"s_cmp_ge_u32 s10, {val}")
        a(f"s_cbranch_scc1 {Lx}")
        if sleep: a(f"s_sleep {sleep}")
        a(f"s_branch {L}")
        a(f"{Lx}:")
        a("s_waitcnt lgkmcnt(0)")
    def check(first, nreg, vt):
        for r in range(first, first + nreg):
            a(f"v_xor_b32 v{r}, s7, v{r}")
        a(f"v_or3_b32 v{vt}, v{first}, v{first+1}, v{first+2}")
        r = first + 3
        while r < first + nreg:
            if r + 1 < first + nreg:
                a(f"v_or3_b32 v{vt}, v{vt}, v{r}, v{r+1}"); r += 2
            else:
                a(f"v_or_b32 v{vt}, v{vt}, v{r}"); r += 1
        a(f"v_and_b32 v{vt}, 0xfff, v{vt}")
        a(f"v_cmp_ne_u32 vcc, 0, v{vt}")
    def pick_copy(vaddr, vtmp):
        a("s_and_b32 s10, s9, 31")
        a("s_cmp_eq_u32 s10, 31")
        a(f"s_cselect_b32 s10, {SLOW:#x}, 0")
        a(f"v_add_u32 v{vtmp}, s10, v{vaddr}")
    def poll(loads, first, nreg, vt, sleep=0, dual=None):
        L = a.label("POLL"); Lx = a.label("POLLX")
        a("s_mov_b32 s9, 0")
        a(f"{L}:")
        if dual: pick_copy(*dual)
        for l in loads: a(l)
        a("s_add_u32 s9, s9, 1")
        a("s_waitcnt vmcnt(0)")
        check(first, nreg, vt)
        a(f"s_cbranch_vccz {Lx}")
        a("s_mov_b64 exec, vcc")
        a(f"s_cmp_gt_u32 s9, {SPIN_MAX}")
        a(f"s_cbranch_scc1 {Lx}")
        if sleep: a(f"s_sleep {sleep}")
        a(f"s_branch {L}")
        a(f"{Lx}:")
        a("s_mov_b64 exec, -1")
    def publish(data, vaddr, soff, soff_slow, imm=0):
        a(f"buffer_store_dwordx4 v[{data}:{data+3}], v{vaddr}, s[40:43], {soff} offen offset:{imm}")
        a(f"buffer_store_dwordx4 v[{data}:{data+3}], v{vaddr}, s[40:43], {soff_slow} offen offset:{imm} sc1")
    def tag(dst, src, vmask):
        a(f"v_and_or_b32 v{dst}, v{src}, v{vmask}, s7")
    def layernorm(xraw, f, t, vlds):
        for k in range(4):
            a(f"v_lshlrev_b32 v{f+2*k}, 16, v{xraw+k}")
            a(f"v_and_b32 v{f+2*k+1}, 0xffff0000, v{xraw+k}")
        a(f"v_readlane_b32 s11, v{f}, 0")
        a(f"v_subrev_f32 v{t}, s11, v{f}")
        a(f"v_mul_f32 v{t+1}, v{t}, v{t}")
        for k in range(1, 8):
            a(f"v_subrev_f32 v{t+2}, s11, v{f+k}")
            a(f"v_add_f32 v{t}, v{t}, v{t+2}")
            a(f"v_fmac_f32 v{t+1}, v{t+2}, v{t+2}")
        for m in ["row_ror:1 row_mask:0xf", "row_ror:2 row_mask:0xf", "row_ror:4 row_mask:0xf", "row_ror:8 row_mask:0xf", "row_bcast:15 row_mask:0xa", "row_bcast:31 row_mask:0xc"]:
            a(f"v_add_f32_dpp v{t}, v{t}, v{t} {m} bank_mask:0xf")
            a(f"v_add_f32_dpp v{t+1}, v{t+1}, v{t+1} {m} bank_mask:0xf")
        a(f"v_readlane_b32 s58, v{t}, 63")
        a(f"v_readlane_b32 s59, v{t+1}, 63")
        a(f"v_mov_b32 v{t+2}, 0x3b000000")
        a(f"v_mul_f32 v{t}, s58, v{t+2}")
        a(f"v_mul_f32 v{t+1}, s59, v{t+2}")
        a(f"v_fma_f32 v{t+1}, -v{t}, v{t}, v{t+1}")
        a(f"v_add_f32 v{t}, s11, v{t}")
        a(f"v_max_f32 v{t+1}, 0, v{t+1}")
        a(f"v_cvt_pk_bf16_f32 v{t+1}, v{t}, v{t+1}")
        a(f"v_lshlrev_b32 v{t}, 16, v{t+1}")
        a(f"v_and_b32 v{t+1}, 0xffff0000, v{t+1}")
        a(f"v_add_f32 v{t+1}, 0x3727c5ac, v{t+1}")
        for k in range(4): a(f"v_sub_f32 v{f+k}, v{f+k}, v{t}")
        rne(t + 1, t + 1)
        for k in range(4, 8): a(f"v_sub_f32 v{f+k}, v{f+k}, v{t}")
        a(f"v_sqrt_f32 v{t+1}, v{t+1}")
        for k in range(4):
            a(f"v_cvt_pk_bf16_f32 v{xraw+k}, v{f+2*k}, v{f+2*k+1}")
        rne(t + 1, t + 1)
        a(f"v_rcp_f32 v{t+1}, v{t+1}")
        for k in range(4):
            a(f"v_lshlrev_b32 v{f+2*k}, 16, v{xraw+k}")
            a(f"v_and_b32 v{f+2*k+1}, 0xffff0000, v{xraw+k}")
        for k in range(8): a(f"v_mul_f32 v{f+k}, v{f+k}, v{t+1}")
        for k in range(4):
            a(f"v_cvt_pk_bf16_f32 v{xraw+k}, v{f+2*k}, v{f+2*k+1}")
        a(f"ds_write_b128 v{vlds}, v[{xraw}:{xraw+3}]")
    def selectors(sel, t):
        a(f"v_and_b32 v{t}, 1, v0")
        a(f"v_cmp_eq_u32 vcc, 1, v{t}")
        a(f"v_mov_b32 v{t}, 0x0c0c0100")
        a(f"v_mov_b32 v{t+1}, 0x01000c0c")
        a(f"v_cndmask_b32 v{t+1}, v{t}, v{t+1}, vcc")
        a(f"v_mov_b32 v{t}, 0x0c0c0302")
        a(f"v_mov_b32 v{t+2}, 0x03020c0c")
        a(f"v_cndmask_b32 v{t+2}, v{t}, v{t+2}, vcc")
        a(f"v_bfe_u32 v{t}, v0, 1, 2")
        a(f"v_mov_b32 v{t+3}, 0x0c0c0c0c")
        for r in range(4):
            a(f"v_cmp_eq_u32 vcc, {r}, v{t}")
            a(f"v_cndmask_b32 v{sel+2*r}, v{t+3}, v{t+1}, vcc")
            a(f"v_cndmask_b32 v{sel+2*r+1}, v{t+3}, v{t+2}, vcc")
    def stage1_mfma(n, xp, sel, abuf, D, W, vm_after, hook=None):
        def perms(t):
            A = abuf + 4 * (t & 1)
            for r in range(4):
                a(f"v_perm_b32 v{A+r}, v{xp+t//2}, v{xp+t//2}, v{sel+2*r+(t&1)}")
        perms(0)
        for t in range(n):
            A = abuf + 4 * (t & 1)
            if t + 1 < n: perms(t + 1)
            a(f"s_waitcnt vmcnt({n-1-t+vm_after})")
            if hook: hook(t)
            c = "0" if t == 0 else f"v[{D}:{D+3}]"
            a(f"v_mfma_f32_16x16x32_bf16 v[{D}:{D+3}], v[{A}:{A+3}], v[{W+4*t}:{W+4*t+3}], {c}")
    def fold_halves(D, t):
        for r in range(4): a(f"v_mov_b32 v{t+r}, v{D+r}")
        for r in range(4): a(f"v_permlane32_swap_b32 v{D+r}, v{t+r}")
        for r in range(4): a(f"v_add_f32_dpp v{D+r}, v{t+r}, v{D+r} row_ror:8 row_mask:0xf bank_mask:0xf")
    def vperm_one(raw, outb, tp, d):
        w = d >> 1
        a(f"v_perm_b32 v{outb+d*4+tp}, v{raw+(2*tp+1)*4+w}, v{raw+(2*tp)*4+w}, s{60+(d&1)}")
    def vperm_pair(raw, outb, tp):
        for d in range(8): vperm_one(raw, outb, tp, d)
    def tr_reduce4(v0_):
        a(f"v_permlane32_swap_b32 v{v0_}, v{v0_+2}")
        a(f"v_permlane32_swap_b32 v{v0_+1}, v{v0_+3}")
        a(f"v_add_f32 v{v0_}, v{v0_}, v{v0_+2}")
        a(f"v_add_f32 v{v0_+1}, v{v0_+1}, v{v0_+3}")
        a(f"v_permlane16_swap_b32 v{v0_}, v{v0_+1}")
        a(f"v_add_f32 v{v0_}, v{v0_}, v{v0_+1}")
    def finish():
        if stamps:
            a("s_waitcnt lgkmcnt(0)")
            a("s_getreg_b32 s86, hwreg(HW_REG_HW_ID)")
            a(f"s_mul_i32 s12, s2, {NW}")
            a("s_add_u32 s12, s12, s3")
            a("s_lshl_b32 s12, s12, 6")
            a(f"s_add_u32 s12, s12, {STAMPS:#x}")
            a("s_mov_b64 exec, 1")
            a("v_mov_b32 v1, 0")
            for k in range(12):
                a(f"v_mov_b32 v{2+k}, s{64+2*k}")
            for k in range(3):
                a(f"buffer_store_dwordx4 v[{2+4*k}:{5+4*k}], v1, s[40:43], s12 offen offset:{16*k}")
        a("s_endpgm")
    def lds_init():
        a(f"""
        v_lshlrev_b32 v2, 2, v0
        v_mov_b32 v3, 0
        v_mov_b32 v4, 0xff800000
        v_lshrrev_b32 v5, 2, v0
        v_cmp_eq_u32 vcc, {(MX-HL)//16}, v5
        v_cndmask_b32 v3, v3, v4, vcc
        ds_write_b32 v2, v3 offset:{HL}
        """)


    def tail_mfma(A, raw, po, acc, cin):
        vperm_one(raw, po, 3, 0); vperm_one(raw, po, 3, 1); vperm_one(raw, po, 3, 2)
        for d in range(8):
            c = f"v[{acc+4*d}:{acc+4*d+3}]" if cin else "0"
            a(f"v_mfma_f32_16x16x32_bf16 v[{acc+4*d}:{acc+4*d+3}], v[{A}:{A+3}], v[{po+4*d}:{po+4*d+3}], {c}")
            if d + 3 < 8: vperm_one(raw, po, 3, d + 3)

    def consts():
        a("""
        s_mov_b32 s42, 0x10000000
        s_mov_b32 s43, 0x20000
        s_mov_b32 s60, 0x05040100
        s_mov_b32 s61, 0x07060302
        v_mov_b32 v15, 0xfffff000
        """)
    a("L_start:")
    stamp(0)
    a(f"""
    s_load_dwordx16 s[16:31], s[0:1], 0
    s_load_dwordx8 s[32:39], s[0:1], 64
    s_load_dwordx2 s[40:41], s[0:1], 96
    v_lshrrev_b32 v1, 6, v0
    v_and_b32 v0, 63, v0
    s_cmpk_ge_u32 s2, 0x100
    s_cbranch_scc1 L_end
    v_readfirstlane_b32 s3, v1
    s_and_b32 s4, s2, 7              ; g
    s_lshr_b32 s5, s2, 4             ; idx
    v_lshrrev_b32 v2, 4, v0          ; q
    v_and_b32 v3, 15, v0             ; i / j'
    s_mov_b32 s47, 0x20000
    s_bitcmp1_b32 s2, 3
    s_cbranch_scc0 T_A
    s_cmp_ge_u32 s3, 2
    s_cbranch_scc1 T_W2
    v_lshrrev_b32 v6, 3, v0
    v_and_b32 v7, 7, v0
    v_lshlrev_b32 v5, 17, v6
    v_lshl_add_u32 v5, v7, 4, v5
    v_lshlrev_b32 v4, 4, v0
    s_lshr_b32 s56, s5, 2            ; kq
    s_and_b32 s13, s5, 3
    s_lshl2_add_u32 s13, s3, s13     ; cb
    s_lshl_b32 s14, s56, 20
    s_lshl3_add_u32 s15, s4, s13     ; g*8+cb
    s_lshl_b32 s15, s15, 7
    s_add_u32 s14, s14, s15
    s_movk_i32 s15, 0x2000
    s_mov_b32 s46, 0x400000
    s_waitcnt lgkmcnt(0)
    s_mov_b64 s[44:45], s[22:23]
    global_load_dwordx4 v[16:19], v4, s[16:17]
    s_branch L_load16
T_W2:
    s_cmp_lt_u32 s3, 8
    s_cbranch_scc1 T_W3
    v_lshlrev_b32 v8, 2, v0
    v_mov_b32 v9, 0
    ds_write_b32 v8, v9 offset:{HL}
    s_waitcnt lgkmcnt(0)
    s_barrier
    s_endpgm
T_W3:
    s_barrier
    s_cmp_ge_u32 s3, 4
    s_cbranch_scc1 R_WO
    s_branch R_B
T_V:
    s_barrier
    s_branch R_V
T_A:
    s_cmp_ge_u32 s3, 5
    s_cbranch_scc1 T_V
    s_cmp_eq_u32 s3, 0
    s_cbranch_scc1 R_P
    ; ---- A waves 1..4: K
    v_lshlrev_b32 v5, 6, v3
    v_lshl_add_u32 v5, v2, 4, v5
    s_sub_u32 s56, s3, 1             ; w
    s_lshl2_add_u32 s13, s5, s56
    s_lshl_b32 s13, s13, 10
    s_lshl_b32 s14, s4, 23
    s_add_u32 s14, s14, s13
    s_add_u32 s14, s14, {28672*256}
    s_mov_b32 s15, 0x10000
    s_mov_b32 s46, 0x4000000
    s_waitcnt lgkmcnt(0)
    s_mov_b64 s[44:45], s[18:19]
    s_barrier
L_load16:
    """)
    stamp(1)
    for t in range(16):
        a(f"buffer_load_dwordx4 v[{64+4*t}:{67+4*t}], v5, s[44:47], s14 offen {NT}")
        if t < 15: a("s_add_u32 s14, s14, s15")
    a("s_bitcmp1_b32 s2, 3")
    a("s_cbranch_scc0 R_K")
    a("s_branch R_Q")
    a(f"""
R_P:
    s_getpc_b64 s[12:13]
L_pc:
    s_and_b32 s14, s5, 1
    s_lshl_b32 s14, s14, 13
    v_lshl_add_u32 v4, v0, 7, s14
    v_min_u32 v4, L_codeend-L_pc-4, v4
    global_load_dword v10, v4, s[12:13]
    s_setprio 3
    v_lshlrev_b32 v8, 2, v0
    v_mov_b32 v9, 0
    v_mov_b32 v4, 0xff800000
    v_lshrrev_b32 v5, 2, v0
    v_cmp_eq_u32 vcc, {(MX-HL)//16}, v5
    v_and_b32 v6, 3, v0
    v_lshlrev_b32 v7, 16, v5
    v_cndmask_b32 v9, v9, v4, vcc
    ds_write_b32 v8, v9 offset:{HL}
    v_lshl_add_u32 v7, v6, 7, v7
    s_lshl4_add_u32 s57, s4, s5
    s_lshl_b32 s57, s57, 9
    s_add_u32 s10, s57, {QP:#x}
    s_mov_b32 s42, 0x10000000
    s_mov_b32 s43, 0x20000
    s_waitcnt lgkmcnt(0)
    s_mov_b32 exec_hi, 0
    buffer_load_dword v11, v7, s[40:43], s10 offen {opts.get('warm_flags', 'sc1')}
    s_mov_b64 exec, -1
    s_load_dword s6, s[40:41], 0
    """)
    if opts.get("a_start", "warm") == "warm": a("s_waitcnt vmcnt(0)")
    elif opts.get("a_start") == "code": a("s_waitcnt vmcnt(1)")
    a("s_barrier")
    a("s_branch R_P2")
    a("L_kb_end:")
    a("R_Q:")
    a("s_barrier")
    epoch_load()
    consts()
    a("s_lshl_b32 s57, s3, 10")
    a("v_add_u32 v8, s57, v4")
    selectors(36, 56)
    a("s_waitcnt vmcnt(16)")
    stamp(2)
    layernorm(16, 20, 56, 8)
    a("s_lshl_b32 s15, s56, 8")
    a("s_add_u32 s15, s15, s57")
    a("v_lshl_add_u32 v8, v6, 5, s15")
    a(f"ds_read_b128 v[28:31], v8")
    a(f"ds_read_b128 v[32:35], v8 offset:16")
    a(f"""
    v_lshlrev_b32 v6, 4, v2
    v_lshl_add_u32 v6, v7, 5, v6
    s_lshl3_add_u32 s63, s56, s13
    s_lshl_b32 s14, s4, 5
    s_add_u32 s14, s14, s63
    s_lshl_b32 s14, s14, 8
    s_add_u32 s14, s14, {QP:#x}
    s_add_u32 s62, s14, {SLOW:#x}
    """)
    a("s_waitcnt lgkmcnt(0)")
    epoch_use()
    flag_prep(FQ)
    a("v_lshlrev_b32 v12, 9, v0")
    a("v_mov_b32 v13, s90")
    lds_spin(CNT_E, 6, 8, sleep=0)
    stamp(8)
    stage1_mfma(16, 28, 36, 44, 52, 64, 0)
    fold_halves(52, 56)
    for r in range(4): tag(52 + r, 52 + r, 15)
    a("s_mov_b64 exec, 0x00ff00ff")
    a("buffer_store_dwordx4 v[52:55], v6, s[40:43], s14 offen")
    flag_store(12)
    a("s_mov_b64 exec, 0x00ff00ff")
    a("buffer_store_dwordx4 v[52:55], v6, s[40:43], s62 offen sc1")
    a("s_mov_b64 exec, -1")
    lds_add1(CNT_K, 8, 9)
    stamp(3)
    finish()

    a("R_P2:")
    stamp(1)
    srd(44, 16, 1024); srd(48, 34, 1024); srd(52, 36, 1024)
    a(f"""
    v_lshlrev_b32 v2, 4, v0
    s_lshl_b32 s14, s4, 13
    s_add_u32 s14, s14, {QP:#x}
    s_add_u32 s15, s14, 4096
    s_waitcnt vmcnt(0) lgkmcnt(0)
    """)
    epoch_use()
    flag_prep(FQ)
    a(f"s_sleep {opts.get('hint_d0', 12)}")
    stamp(2)
    hint_wait(opts.get("hint_sleep", 3))
    stamp(5)
    ql = lambda va: [f"buffer_load_dwordx4 v[{64+4*n}:{67+4*n}], v{va}, s[40:43], {'s14' if n < 4 else 's15'} offen offset:{(n&3)*1024} sc1" for n in range(8)]
    for l in ql(2): a(l)
    lds_add1(CNT_K, 8, 9)
    a("s_waitcnt vmcnt(0)")
    check(64, 32, 6)
    a("s_cbranch_vccz P_ok")
    a("s_mov_b64 exec, vcc")
    poll(ql(5), 64, 32, 6, dual=(2, 5))
    a("P_ok:")
    for r in range(8):
        a(f"v_add_f32 v{24+r}, v{64+r}, v{72+r}")
        a(f"v_add_f32 v{32+r}, v{80+r}, v{88+r}")
    for r in range(8): a(f"v_add_f32 v{24+r}, v{24+r}, v{32+r}")
    stamp(4)
    a(f"""
    v_cvt_pk_bf16_f32 v20, v24, v25
    v_cvt_pk_bf16_f32 v21, v26, v27
    v_cvt_pk_bf16_f32 v22, v28, v29
    v_cvt_pk_bf16_f32 v23, v30, v31
    v_lshlrev_b32 v6, 3, v0
    ds_write_b64 v6, v[20:21] offset:{QL}
    ds_write_b64 v6, v[22:23] offset:{QL+512}
    v_mov_b32 v7, {QFLAG}
    v_mov_b32 v8, s7
    ds_write_b32 v7, v8 offset:{TAGW-QFLAG}
    v_mov_b32 v8, 1
    ds_write_b32 v7, v8
    s_and_b32 s12, s5, 8
    s_add_u32 s12, s12, s4
    s_lshl_b32 s12, s12, 7
    s_and_b32 s13, s5, 7
    s_lshl_b32 s13, s13, 4
    s_add_u32 s12, s12, s13          ; pos
    s_lshr_b32 s13, s12, 9           ; cc
    s_lshl_b32 s13, s13, 7
    s_bfe_u32 s14, s12, 0x40004      ; j'
    s_lshl_b32 s14, s14, 3
    s_add_u32 s13, s13, s14
    s_bfe_u32 s14, s12, 0x10008      ; G
    s_lshl_b32 s14, s14, 2
    s_add_u32 s13, s13, s14          ; col0
    s_lshl_b32 s13, s13, 1
    v_lshrrev_b32 v9, 4, v0
    v_lshlrev_b32 v9, 1, v9
    v_lshlrev_b32 v10, 11, v0
    buffer_load_ushort v11, v9, s[44:47], s13 offen
    buffer_load_ushort v12, v9, s[48:51], s13 offen
    s_add_u32 s14, s12, {SP:#x}
    s_add_u32 s15, s14, 0x20000
    s_add_u32 s56, s12, {YP:#x}
    """)
    lds_spin(CNT_V, 2, 6, sleep=2)
    stamp(8)
    poll([f"buffer_load_dwordx4 v[72:75], v10, s[40:43], s56 offen sc1"], 72, 4, 6, sleep=1)
    stamp(9)
    tr_reduce4(72)
    for sh in (8, 4, 2, 1):
        a(f"v_add_f32_dpp v72, v72, v72 row_ror:{sh} row_mask:0xf bank_mask:0xf")
    a("v_lshlrev_b32 v11, 16, v11")
    a("v_lshlrev_b32 v12, 16, v12")
    rne(72, 72)
    a("v_add_f32 v72, v72, v12")
    rne(72, 72)
    a(f"v_mul_f32 v13, {LOG2E ^ 0x80000000:#x}, v72")
    a("v_exp_f32 v13, v13")
    a("v_add_f32 v13, 1.0, v13")
    a("v_rcp_f32 v13, v13")
    a("v_mul_f32 v13, v72, v13")
    rne(13, 13)
    poll([f"buffer_load_dwordx4 v[64:67], v10, s[40:43], s14 offen sc1",
          f"buffer_load_dwordx4 v[68:71], v10, s[40:43], s15 offen sc1"], 64, 8, 6, sleep=opts.get("s_sleep", 0))
    stamp(6)
    for r in range(4): a(f"v_add_f32 v{64+r}, v{64+r}, v{68+r}")
    tr_reduce4(64)
    for sh in (8, 4, 2, 1):
        a(f"v_add_f32_dpp v64, v64, v64 row_ror:{sh} row_mask:0xf bank_mask:0xf")
    rne(64, 64)
    a("v_mul_f32 v64, v64, v13")
    rne(64, 64)
    a("v_add_f32 v64, v64, v11")
    a("v_cvt_pk_bf16_f32 v64, v64, v64")
    a("s_mov_b32 exec_lo, 0x00010001")
    a("s_mov_b32 exec_hi, 0x00010001")
    a("buffer_store_short v64, v9, s[52:55], s13 offen")
    a(f"""
    s_cmp_lg_u32 s2, 0
    s_cbranch_scc1 L_fin
    s_mov_b64 exec, 1
    v_mov_b32 v6, 0
    v_mov_b32 v7, s8
    buffer_store_dword v7, v6, s[40:43], 0 offen
    """)
    a("L_fin:")
    stamp(7)
    finish()

    a("R_K:")
    lds_add1(CNT_E, 8, 9)
    stamp(2)
    consts()
    a(f"""
    v_lshrrev_b32 v6, 2, v3          ; head
    s_mov_b32 s52, 0xaaaaaaaa
    s_mov_b32 s53, 0xaaaaaaaa
    s_mov_b32 s54, 0xcccccccc
    s_mov_b32 s55, 0xcccccccc
    v_lshlrev_b32 v10, 2, v6         ; head*4
    v_mov_b32 v12, 1
    v_lshlrev_b32 v11, 6, v6
    v_lshl_add_u32 v11, v2, 2, v11
    s_lshl_b32 s15, s56, 4
    v_add_u32 v11, s15, v11
    v_lshlrev_b32 v13, 6, v6
    v_lshl_add_u32 v13, v2, 4, v13
    v_bfe_u32 v4, v0, 1, 1
    v_lshl_add_u32 v13, v4, 8, v13
    v_and_b32 v4, 1, v0
    v_lshl_add_u32 v13, v4, 3, v13
    s_lshl_b32 s15, s56, 9
    v_add_u32 v13, s15, v13
    s_lshl_b32 s15, s56, 2
    s_add_u32 s15, s15, {PF}
    v_mov_b32 v14, s15
    v_mov_b32 v4, {CNT_L}
    v_mov_b32 v7, {CNT_M}
    """)
    if opts.get("gate", 1):
        a(f"s_waitcnt vmcnt({opts.get('gate_k', 2)})")
        lds_add1(CNT_K, 8, 9)
    lds_spin(QFLAG, 1, 8, sleep=opts.get("q_sleep", 1))
    stamp(3)
    a(f"ds_read_b128 v[60:63], v5 offset:{QL}")
    a(f"ds_read_b32 v1, v8 offset:{TAGW-QFLAG}")
    a("s_waitcnt lgkmcnt(0)")
    def Dreg(n):
        return 32 + 4 * (n & 3) if (n >> 2) == 0 else 64 + 4 * (n - 4)
    def red4(n0):
        for r in range(4):
            for n in range(n0, n0 + 4):
                D = Dreg(n)
                if r == 0: a(f"v_mov_b32_dpp v{16+n}, v{D} quad_perm:[0,0,0,0] row_mask:0xf bank_mask:0xf")
                else: a(f"v_add_f32_dpp v{16+n}, v{D+r}, v{16+n} quad_perm:[{r},{r},{r},{r}] row_mask:0xf bank_mask:0xf")
    for n in range(16):
        D = Dreg(n)
        if n & 3 == 0: a(f"s_waitcnt vmcnt({12-n})")
        a(f"v_mfma_f32_16x16x32_bf16 v[{D}:{D+3}], v[{64+4*n}:{67+4*n}], v[60:63], 0")
        if n & 3 == 3 and n >= 7: red4(n - 7)
    a("v_readfirstlane_b32 s7, v1")
    red4(12)
    stamp(8)
    for i in range(4):
        a(f"v_cndmask_b32 v{32+i}, v{16+i}, v{20+i}, s[52:53]")
        a(f"v_cndmask_b32 v{36+i}, v{24+i}, v{28+i}, s[52:53]")
    for i in range(4): a(f"v_cndmask_b32 v{16+i}, v{32+i}, v{36+i}, s[54:55]")
    a("s_mov_b32 s14, 0x3db504f3")
    for rep in range(2):
        for p in range(2): a(f"v_cvt_pk_bf16_f32 v{32+p}, v{16+2*p}, v{17+2*p}")
        for p in range(2):
            a(f"v_lshlrev_b32 v{16+2*p}, 16, v{32+p}")
            a(f"v_and_b32 v{17+2*p}, 0xffff0000, v{32+p}")
        if rep == 0:
            for k in range(4): a(f"v_mul_f32 v{16+k}, s14, v{16+k}")
    a(f"""
    v_max3_f32 v8, v16, v17, v18
    v_max_f32 v8, v8, v19
    v_max_f32_dpp v8, v8, v8 quad_perm:[1,0,3,2] row_mask:0xf bank_mask:0xf
    v_max_f32_dpp v8, v8, v8 quad_perm:[2,3,0,1] row_mask:0xf bank_mask:0xf
    s_mov_b32 exec_lo, 0x11111111
    s_mov_b32 exec_hi, 0x11111111
    ds_max_f32 v10, v8 offset:{MX}
    s_mov_b64 exec, 1
    ds_add_u32 v7, v12
    s_mov_b64 exec, -1
    """)
    lds_spin(CNT_M, 4, 20, sleep=0)
    a(f"""
    ds_read_b32 v8, v10 offset:{MX}
    s_mov_b32 s14, {LOG2E:#x}
    s_waitcnt lgkmcnt(0)
    v_mul_f32 v9, s14, v8
    """)
    for k in range(4): a(f"v_fma_f32 v{16+k}, v{16+k}, s14, -v9")
    for k in range(4): a(f"v_exp_f32 v{16+k}, v{16+k}")
    for p in range(2): a(f"v_cvt_pk_bf16_f32 v{32+p}, v{16+2*p}, v{17+2*p}")
    a(f"""
    ds_write_b64 v13, v[32:33] offset:{PL}
    s_mov_b64 exec, 1
    ds_write_b32 v14, v12
    s_mov_b64 exec, -1
    v_add_f32 v16, v16, v17
    v_add_f32 v18, v18, v19
    v_add_f32 v16, v16, v18
    v_add_f32_dpp v16, v16, v16 quad_perm:[1,0,3,2] row_mask:0xf bank_mask:0xf
    v_add_f32_dpp v16, v16, v16 quad_perm:[2,3,0,1] row_mask:0xf bank_mask:0xf
    s_mov_b32 exec_lo, 0x11111111
    s_mov_b32 exec_hi, 0x11111111
    ds_write_b32 v11, v16 offset:{LT}
    s_mov_b64 exec, 1
    ds_add_u32 v4, v12
    s_mov_b64 exec, -1
    """)
    stamp(4)
    a(f"""
    s_lshl4_add_u32 s57, s4, s5      ; cell
    s_cmp_ge_u32 s56, 2
    s_cbranch_scc1 K_ml
    s_setprio 3
    v_lshlrev_b32 v6, 16, v6         ; (j'>>2) << 16
    v_and_b32 v7, 3, v3
    v_lshl_add_u32 v6, v7, 7, v6
    v_lshl_add_u32 v6, v2, 4, v6
    s_lshl_b32 s14, s57, 9
    s_lshl_b32 s15, s56, 6
    s_add_u32 s14, s14, s15
    s_add_u32 s14, s14, {OP:#x}
    s_add_u32 s15, s14, {SLOW:#x}
    s_lshl_b32 s13, s56, 10
    v_lshl_add_u32 v19, v0, 4, s13
    """)
    lds_spin(CNT_O, 4, 20, sleep=0)
    stamp(6)
    for w in range(4): a(f"ds_read_b128 v[{32+4*w}:{35+4*w}], v19 offset:{OPART+2048*w}")
    a("s_waitcnt lgkmcnt(2)")
    for r in range(4): a(f"v_add_f32 v{32+r}, v{32+r}, v{36+r}")
    a("s_waitcnt lgkmcnt(0)")
    for r in range(4): a(f"v_add_f32 v{40+r}, v{40+r}, v{44+r}")
    for r in range(4): a(f"v_add_f32 v{32+r}, v{32+r}, v{40+r}")
    for r in range(4): tag(32 + r, 32 + r, 15)
    a("buffer_store_dwordx4 v[32:35], v6, s[40:43], s14 offen")
    stamp(7)
    a("buffer_store_dwordx4 v[32:35], v6, s[40:43], s15 offen sc1")
    lds_add1(CNT_V, 8, 9)
    finish()
    a(f"""
K_ml:
    s_cmp_eq_u32 s56, 3
    s_cbranch_scc1 K_done
    v_lshlrev_b32 v22, 2, v0
    v_lshlrev_b32 v23, 2, v2         ; MX[head]
    v_lshlrev_b32 v7, 9, v3
    v_lshl_add_u32 v7, v2, 3, v7     ; x*512 + head*8
    s_lshl_b32 s52, s4, 13
    s_lshl_b32 s53, s5, 5
    s_add_u32 s52, s52, s53
    s_add_u32 s52, s52, {ML:#x}
    s_add_u32 s53, s52, {SLOW:#x}
    """)
    lds_spin(CNT_L, 4, 8, sleep=0)
    a(f"""
    ds_read_b32 v17, v22 offset:{LT}
    ds_read_b32 v16, v23 offset:{MX}
    s_waitcnt lgkmcnt(0)
    """)
    for sh in (8, 4, 2, 1):
        a(f"v_add_f32_dpp v17, v17, v17 row_ror:{sh} row_mask:0xf bank_mask:0xf")
    tag(12, 16, 15); tag(13, 17, 15)
    a("buffer_store_dwordx2 v[12:13], v7, s[40:43], s52 offen")
    a("buffer_store_dwordx2 v[12:13], v7, s[40:43], s53 offen sc1")
    a("K_done:")
    finish()

    a(f"""
R_V:
    s_sub_u32 s56, s3, 5             ; w
    s_lshl2_add_u32 s13, s5, s56
    s_lshl_b32 s13, s13, 10
    s_lshl_b32 s12, s4, 23
    s_add_u32 s12, s12, s13
    s_add_u32 s12, s12, {28672*256}
    s_mov_b32 s15, 0x10000
    s_mov_b32 s46, 0x4000000
    v_lshlrev_b32 v4, 4, v0          ; V voff
    v_lshrrev_b32 v6, 2, v3
    v_lshlrev_b32 v13, 6, v6
    v_lshl_add_u32 v13, v2, 4, v13
    s_lshl_b32 s14, s56, 9
    v_add_u32 v13, s14, v13          ; P address
    s_lshl_b32 s57, s56, 2
    s_add_u32 s57, s57, {PF}
    s_lshl_b32 s14, s56, 11
    v_add_u32 v19, s14, v4
    v_mov_b32 v20, 1
    v_mov_b32 v21, {CNT_O}
    """)
    consts()
    a("s_waitcnt lgkmcnt(0)")
    a("s_mov_b64 s[44:45], s[20:21]")
    stamp(1)
    lds_spin(CNT_E, 4, 8, sleep=1)
    for n in range(16):
        if opts.get("gate", 1) and n == opts.get("v_pre", 0): lds_spin(CNT_K, 1, 8, sleep=1)
        a(f"buffer_load_dwordx4 v[{64+4*n}:{67+4*n}], v4, s[44:47], s12 offen {NT}")
        if n < 15: a("s_add_u32 s12, s12, s15")
    stamp(2)
    for tp in range(4):
        a(f"s_waitcnt vmcnt({14-2*tp})")
        vperm_pair(64, 32, tp)
    for tp in range(2):
        a(f"s_waitcnt vmcnt({6-2*tp})")
        vperm_pair(96, 64, tp)
    lds_spin("s57", 1, 8, sleep=0)
    stamp(3)
    a(f"ds_read_b128 v[24:27], v13 offset:{PL}")
    a(f"ds_read_b128 v[28:31], v13 offset:{PL+256}")
    a("s_waitcnt lgkmcnt(1)")
    for d in range(8):
        a(f"v_mfma_f32_16x16x32_bf16 v[{128+4*d}:{131+4*d}], v[24:27], v[{32+4*d}:{35+4*d}], 0")
    a("s_waitcnt vmcnt(2)")
    vperm_pair(96, 64, 2)
    a("s_waitcnt vmcnt(0) lgkmcnt(0)")
    stamp(5)
    tail_mfma(28, 96, 64, 128, True)
    for d in range(4): a(f"v_mov_b32 v{96+d}, v{128+4*d}")
    a(f"ds_write_b128 v19, v[96:99] offset:{OPART}")
    for d in range(4, 8): a(f"v_mov_b32 v{96+d}, v{128+4*d}")
    a(f"""
    ds_write_b128 v19, v[100:103] offset:{OPART+1024}
    s_mov_b64 exec, 1
    ds_add_u32 v21, v20
    s_mov_b64 exec, -1
    """)
    stamp(7)
    finish()

    a(f"""
R_B:
    s_lshl_b32 s5, s5, 1
    s_add_u32 s5, s5, s3
    s_sub_u32 s5, s5, 2
    v_lshlrev_b32 v2, 4, v0
    v_lshrrev_b32 v3, 3, v0
    v_and_b32 v4, 7, v0
    v_mul_u32_u24 v5, {8*3584}, v3
    v_lshl_add_u32 v5, v4, 4, v5
    s_lshr_b32 s12, s5, 2
    s_and_b32 s13, s5, 3
    s_and_b32 s14, s4, 1
    s_xor_b32 s15, s14, 1
    s_mul_i32 s15, s15, 3
    s_xor_b32 s14, s14, 1
    s_cmp_eq_u32 s13, s15
    s_cselect_b32 s14, s14, 2
    v_lshrrev_b32 v6, 2, v4
    v_cmp_eq_u32 vcc, s14, v6
    v_mov_b32 v7, 0x7fffff00
    v_cndmask_b32 v5, v5, v7, vcc
    s_mul_i32 s14, s4, 7
    s_lshr_b32 s14, s14, 1
    s_add_u32 s14, s14, s13
    s_lshl_b32 s14, s14, 7
    s_mul_i32 s15, s12, {64*3584}
    s_add_u32 s14, s14, s15          ; w1 soffset
    v_lshrrev_b32 v8, 4, v0
    v_and_b32 v9, 15, v0
    v_lshlrev_b32 v10, 13, v8
    v_lshl_add_u32 v10, v9, 4, v10
    v_cmp_eq_u32 vcc, 3, v8
    v_cndmask_b32 v11, v10, v7, vcc
    s_lshl_b32 s56, s4, 3
    s_add_u32 s56, s56, s12          ; kc
    s_mul_i32 s57, s56, {28*1024}
    s_lshl_b32 s15, s13, 8
    s_add_u32 s57, s57, s15          ; w2 soffset
    s_add_u32 s92, s57, 4096
    v_min_u32 v12, 6, v4
    v_lshl_add_u32 v13, v12, 2, v8
    v_lshlrev_b32 v13, 1, v13
    s_mul_i32 s15, s56, 56
    s_lshl_b32 s62, s3, 10
    v_add_u32 v7, s62, v2
    s_and_b32 s63, s3, 1
    s_lshl_b32 s63, s63, 6
    s_waitcnt lgkmcnt(0)
    """)
    srd(44, 16, 1024); srd(48, 28, 1835008); srd(52, 32, 1835008)
    consts()
    epoch_load()
    a("s_waitcnt lgkmcnt(0)")
    epoch_use()
    lds_add1(CNT_E, 56, 57)
    selectors(36, 56)
    a("v_mov_b32 v15, 0xfffff000")
    lds_spin(CNT_K, 2, 56, sleep=1)
    a("buffer_load_dwordx4 v[16:19], v2, s[44:47], 0 offen")
    srd(44, 30, 3584)
    a("buffer_load_ushort v14, v13, s[44:47], s15 offen")
    a("v_add_u32 v13, s63, v13")
    for t in range(8):
        a(f"buffer_load_dwordx4 v[{64+4*t}:{67+4*t}], v5, s[48:51], s14 offen {NT}")
        if t < 7: a("s_add_u32 s14, s14, 3584")
    stamp(1)
    a("s_waitcnt vmcnt(8)")
    layernorm(16, 20, 56, 7)
    a("s_lshl_b32 s15, s12, 7")
    a("s_add_u32 s15, s15, s62")
    a("v_lshl_add_u32 v6, v3, 4, s15")
    a(f"ds_read_b128 v[28:31], v6")
    a(f"""
    v_lshrrev_b32 v6, 4, v0
    v_lshlrev_b32 v6, 4, v6
    v_lshl_add_u32 v6, v4, 5, v6
    s_lshl_b32 s14, s56, 10
    s_lshl_b32 s15, s13, 8
    s_add_u32 s14, s14, s15
    s_add_u32 s14, s14, {HP:#x}
    s_add_u32 s15, s14, {SLOW:#x}
    """)
    a("s_waitcnt lgkmcnt(0)")
    stamp(2)
    stage1_mfma(8, 28, 36, 44, 52, 64, 0)
    fold_halves(52, 56)
    for r in range(4): tag(52 + r, 52 + r, 15)
    a("s_mov_b64 exec, 0x00ff00ff")
    publish(52, 6, "s14", "s15")
    a("s_mov_b64 exec, -1")
    lds_add1(CNT_K, 56, 57)
    stamp(3)
    for t in range(8):
        vo, so = ("v10", "s57") if t < 4 else ("v11", "s92")
        a(f"buffer_load_dwordx4 v[{96+4*t}:{99+4*t}], {vo}, s[52:55], {so} offen offset:{(t&3)*1024} {NT}")
    a(f"""
    v_lshlrev_b32 v6, 10, v3
    v_lshl_add_u32 v6, v12, 4, v6
    s_lshl_b32 s14, s4, 13
    s_and_b32 s15, s4, 1
    s_lshl_b32 s15, s15, 7
    s_add_u32 s14, s14, s15
    s_mul_i32 s15, s12, 112
    s_add_u32 s14, s14, s15
    s_add_u32 s14, s14, {HP:#x}
    """)
    for tp in range(4):
        a(f"s_waitcnt vmcnt({6-2*tp})")
        if tp == 0: lds_add1(CNT_K, 56, 57)
        vperm_pair(96, 64, tp)
    stamp(8)
    poll([f"buffer_load_dwordx4 v[20:23], v5, s[40:43], s14 offen sc1"], 20, 4, 7, sleep=1, dual=(6, 5))
    stamp(4)
    tr_reduce4(20)
    a("v_add_f32_dpp v20, v20, v20 row_ror:8 row_mask:0xf bank_mask:0xf")
    a("v_lshlrev_b32 v14, 16, v14")
    rne(20, 20)
    a("v_add_f32 v20, v20, v14")
    rne(20, 20)
    c0 = -2.0 * 0.7978845608028654 * 1.4426950408889634
    a(f"""
    v_mul_f32 v21, v20, v20
    v_mov_b32 v22, {f2u(c0):#x}
    v_mov_b32 v23, {f2u(c0*0.044715):#x}
    v_fma_f32 v21, v21, v23, v22
    v_mul_f32 v21, v21, v20
    v_exp_f32 v21, v21
    v_add_f32 v21, 1.0, v21
    v_rcp_f32 v21, v21
    v_mul_f32 v20, v20, v21
    v_cvt_pk_bf16_f32 v20, v20, v20
    ds_write_b16 v13, v20 offset:{HL}
    v_lshl_add_u32 v6, v8, 4, s63
    ds_read_b128 v[24:27], v6 offset:{HL}
    v_lshlrev_b32 v6, 4, v0
    s_lshl_b32 s14, s56, 11
    s_lshl_b32 s15, s13, 9
    s_add_u32 s14, s14, s15
    s_add_u32 s14, s14, {YP:#x}
    s_waitcnt lgkmcnt(0)
    """)
    for d in range(8):
        a(f"v_mfma_f32_16x16x32_bf16 v[{96+4*d}:{99+4*d}], v[24:27], v[{64+4*d}:{67+4*d}], 0")
    for d in range(8): tag(28 + d, 96 + 4 * d, 15)
    a("s_mov_b64 exec, 0xffff")
    a("buffer_store_dwordx4 v[28:31], v6, s[40:43], s14 offen sc1")
    a("buffer_store_dwordx4 v[32:35], v6, s[40:43], s14 offen offset:256 sc1")
    a("s_mov_b64 exec, -1")
    stamp(7)
    finish()

    a(f"""
R_WO:
    s_sub_u32 s13, s3, 4             ; cc
    s_lshl_b32 s62, s4, 19
    s_lshl_b32 s15, s5, 13
    s_add_u32 s62, s62, s15
    s_lshl_b32 s15, s13, 8
    s_add_u32 s62, s62, s15
    s_add_u32 s63, s62, 4096
    v_lshrrev_b32 v8, 4, v0
    v_and_b32 v9, 15, v0
    v_lshlrev_b32 v10, 17, v8
    v_lshl_add_u32 v10, v9, 4, v10
    v_bfe_u32 v11, v0, 1, 3          ; sub
    v_and_b32 v12, 1, v0
    v_lshlrev_b32 v13, 9, v11
    v_lshl_add_u32 v13, v12, 6, v13
    v_lshl_add_u32 v13, v8, 4, v13
    v_lshlrev_b32 v14, 5, v11
    v_lshl_add_u32 v14, v8, 3, v14
    v_mov_b32 v15, 0xfffff000
    s_lshl_b32 s14, s4, 4
    s_add_u32 s14, s14, s5
    s_lshl_b32 s14, s14, 9
    s_add_u32 s14, s14, {ML:#x}
    s_lshr_b32 s52, s5, 2
    s_lshl_b32 s52, s52, 16
    s_and_b32 s15, s5, 3
    s_lshl_b32 s15, s15, 7
    s_add_u32 s52, s52, s15
    s_lshl_b32 s15, s4, 13
    s_add_u32 s52, s52, s15
    s_add_u32 s52, s52, {OP:#x}      ; o soffset
    s_add_u32 s53, s52, 0x1000
    s_lshl_b32 s58, s4, 4
    s_add_u32 s58, s58, s5
    s_lshl_b32 s58, s58, 11
    s_lshl_b32 s59, s13, 9
    s_add_u32 s58, s58, s59
    s_add_u32 s58, s58, {SP:#x}
    v_lshlrev_b32 v6, 4, v0
    s_waitcnt lgkmcnt(0)
    """)
    srd(48, 24, 4194304)
    consts()
    epoch_load()
    stamp(1)
    a("s_waitcnt lgkmcnt(0)")
    epoch_use()
    lds_add1(CNT_E, 2, 3)
    r0, r1 = opts.get("wo_rel", (4, 6))
    a("s_cmp_lt_u32 s13, 2")
    a(f"s_cselect_b32 s59, {r0}, {r1}")
    lds_spin(CNT_K, "s59", 2, sleep=2)
    stamp(2)
    for t in range(8):
        so = "s62" if t < 4 else "s63"
        a(f"buffer_load_dwordx4 v[{96+4*t}:{99+4*t}], v10, s[48:51], {so} offen offset:{(t&3)*1024} {NT}")
    for tp in range(4):
        a(f"s_waitcnt vmcnt({6-2*tp})")
        if tp == 0: lds_add1(CNT_K, 2, 3)
        vperm_pair(96, 64, tp)
    stamp(3)
    for n in range(2): a(f"buffer_load_dwordx4 v[{20+4*n}:{23+4*n}], v13, s[40:43], s{52+n} offen sc1")
    poll([f"buffer_load_dwordx2 v[{16+2*n}:{17+2*n}], v4, s[40:43], s14 offen offset:{n*256} sc1" for n in range(2)], 16, 4, 2, sleep=opts.get("ml_sleep", 1), dual=(14, 4))
    stamp(4)
    for n in range(2): a(f"buffer_load_dwordx4 v[{20+4*n}:{23+4*n}], v13, s[40:43], s{52+n} offen sc1")
    a(f"""
    v_max_f32 v48, v16, v18
    v_max_f32_dpp v48, v48, v48 quad_perm:[2,3,0,1] row_mask:0xf bank_mask:0xf
    v_max_f32_dpp v48, v48, v48 row_ror:4 row_mask:0xf bank_mask:0xf
    v_max_f32_dpp v48, v48, v48 row_ror:8 row_mask:0xf bank_mask:0xf
    """)
    for n in range(2): a(f"v_sub_f32 v{52+n}, v{16+2*n}, v48")
    for n in range(2): a(f"v_mul_f32 v{52+n}, {LOG2E:#x}, v{52+n}")
    for n in range(2): a(f"v_exp_f32 v{52+n}, v{52+n}")
    a("v_mul_f32 v49, v52, v17")
    a("v_fmac_f32 v49, v53, v19")
    for m in ["quad_perm:[2,3,0,1]", "row_ror:4", "row_ror:8"]:
        a(f"v_add_f32_dpp v49, v49, v49 {m} row_mask:0xf bank_mask:0xf")
    a("v_rcp_f32 v49, v49")
    for n in range(2): a(f"v_mul_f32 v{52+n}, v{52+n}, v49")
    a("s_waitcnt vmcnt(0)")
    check(20, 8, 2)
    a("s_cbranch_vccz WO_ok")
    a("s_mov_b64 exec, vcc")
    poll([f"buffer_load_dwordx4 v[{20+4*n}:{23+4*n}], v5, s[40:43], s{52+n} offen sc1" for n in range(2)], 20, 8, 2, dual=(13, 5))
    a("WO_ok:")
    stamp(5)
    for r in range(4): a(f"v_mul_f32 v{56+r}, v52, v{20+r}")
    for r in range(4): a(f"v_fmac_f32 v{56+r}, v53, v{24+r}")
    for m in ["quad_perm:[2,3,0,1]", "row_ror:4", "row_ror:8"]:
        for r in range(4): a(f"v_add_f32_dpp v{56+r}, v{56+r}, v{56+r} {m} row_mask:0xf bank_mask:0xf")
    a(f"""
    v_cvt_pk_bf16_f32 v60, v56, v57
    v_cvt_pk_bf16_f32 v61, v58, v59
    v_mov_b32_dpp v62, v60 quad_perm:[1,0,3,2] row_mask:0xf bank_mask:0xf
    v_mov_b32_dpp v63, v61 quad_perm:[1,0,3,2] row_mask:0xf bank_mask:0xf
    """)
    for d in range(8):
        a(f"v_mfma_f32_16x16x32_bf16 v[{96+4*d}:{99+4*d}], v[60:63], v[{64+4*d}:{67+4*d}], 0")
    for d in range(4): tag(16 + d, 96 + 4 * d, 15)
    a("s_mov_b64 exec, 0xffff")
    a("buffer_store_dwordx4 v[16:19], v6, s[40:43], s58 offen sc1")
    for d in range(4, 8): tag(16 + d, 96 + 4 * d, 15)
    a("buffer_store_dwordx4 v[20:23], v6, s[40:43], s58 offen offset:256 sc1")
    a("s_mov_b64 exec, -1")
    stamp(7)
    finish()


    a("L_end:")
    a("s_endpgm")
    a("L_codeend:")
    lines = hazard.fix(a.lines)
    body = "\n".join(lines) + "\n"
    txt = wrap(body, 256, NW * 64, LDS_BYTES, 160, sgpr=96, header=HEADER)
    txt = txt.replace(".p2align 8\n.type", ".p2align 10\n.p2align 8\n.type")
    open(out, "w").write(txt)

if __name__ == "__main__":
    out = sys.argv[1] if len(sys.argv) > 1 else "k7.s"
    opts = eval(sys.argv[4]) if len(sys.argv) > 4 else {}
    gen(out, nt=(sys.argv[2] if len(sys.argv) > 2 else "nt"), stamps=(len(sys.argv) > 3 and sys.argv[3] == "1"), opts=opts)
```
